```python
import torch

def _softmax(x, axis=-1):
    return torch.softmax(x, dim=axis)
def _gelu(x):
    return torch.nn.functional.gelu(x, approximate="tanh")
def _silu(x):
    return torch.nn.functional.silu(x)
def _sigmoid(x):
    return torch.sigmoid(x)
def _layernorm(x, axis=-1, eps=1e-5):
    m = x.mean(dim=axis, keepdim=True)
    v = x.var(dim=axis, keepdim=True, unbiased=False)
    return (x - m) / torch.sqrt(v + eps)
def _scatter_add(tgt, idx, src, axis=0):
    return tgt.clone().index_add_(axis, idx, src)
def _segment_sum(src, seg, n):
    out = torch.zeros((n,) + src.shape[1:], dtype=src.dtype)
    return out.index_add_(0, seg, src)
def _pad(x, pw):
    flat = tuple(v for pair in reversed(pw) for v in pair)
    return torch.nn.functional.pad(x, flat)

kernel_name = 'gated_mix__ssm_conv_s5__glu_gated_reglu__prompt'

def setup_inputs():

    _w = (lambda a: (lambda t: t.to(torch.bfloat16) if t.is_floating_point() else t)(torch.as_tensor(a)))
    def _A_setup():
        B, S, D = 1, 2048, 1024
        P = D
        Lambda_re = -0.5 * (lambda _x: torch.exp(torch.as_tensor(_x)))((lambda *s: torch.randn(*s, dtype=torch.bfloat16) * 0.2)(P))
        Lambda_im = (lambda *s: torch.randn(*s, dtype=torch.bfloat16) * 0.4)(P) * 1.0
        B_re = (lambda *s: torch.randn(*s, dtype=torch.bfloat16) * 0.2)(P, D) * (D ** -0.5)
        B_im = (lambda *s: torch.randn(*s, dtype=torch.bfloat16) * 0.2)(P, D) * (D ** -0.5)
        C_re = (lambda *s: torch.randn(*s, dtype=torch.bfloat16) * 0.2)(D, P) * (P ** -0.5)
        C_im = (lambda *s: torch.randn(*s, dtype=torch.bfloat16) * 0.2)(D, P) * (P ** -0.5)
        log_dt = (lambda *s: torch.randn(*s, dtype=torch.bfloat16) * 0.2)(P) * 0.3 - 2.0
        Dskip = (lambda *s: torch.randn(*s, dtype=torch.bfloat16) * 0.05)(D)
        return {
            "x": _w((lambda *s: torch.randn(*s, dtype=torch.bfloat16) * 0.05)(B, S, D)),
            "Lambda_re": _w(Lambda_re),
            "Lambda_im": _w(Lambda_im),
            "B_re": _w(B_re),
            "B_im": _w(B_im),
            "C_re": _w(C_re),
            "C_im": _w(C_im),
            "log_dt": _w(log_dt),
            "Dskip": _w(Dskip),
        }
    _A_in = _A_setup()

    def _B_setup():
        B, S, D, F = 1, 2048, 1024, 3584
        return {
            "x": _w((lambda *s: torch.randn(*s, dtype=torch.bfloat16) * 0.05)(B, S, D)),
            "W_gate": _w((lambda *s: torch.randn(*s, dtype=torch.bfloat16) * 0.8)(D, F) * (2.0 / D) ** 0.5),
            "W_up": _w((lambda *s: torch.randn(*s, dtype=torch.bfloat16) * 0.8)(D, F) * (2.0 / D) ** 0.5),
            "W_down": _w((lambda *s: torch.randn(*s, dtype=torch.bfloat16) * 0.8)(F, D) * (1.0 / F) ** 0.5),
        }
    _B_in = _B_setup()

    return {
        "A_x": _A_in["x"],
        "A_Lambda_re": _A_in["Lambda_re"],
        "A_Lambda_im": _A_in["Lambda_im"],
        "A_B_re": _A_in["B_re"],
        "A_B_im": _A_in["B_im"],
        "A_C_re": _A_in["C_re"],
        "A_C_im": _A_in["C_im"],
        "A_log_dt": _A_in["log_dt"],
        "A_Dskip": _A_in["Dskip"],
        "B_x": _B_in["x"],
        "B_W_gate": _B_in["W_gate"],
        "B_W_up": _B_in["W_up"],
        "B_W_down": _B_in["W_down"],
        "gate_w": _w((lambda *s: torch.randn(*s, dtype=torch.bfloat16) * 0.05)(1024) * 16.0),
    }

def reference(A_x, A_Lambda_re, A_Lambda_im, A_B_re, A_B_im, A_C_re, A_C_im, A_log_dt, A_Dskip, B_x, B_W_gate, B_W_up, B_W_down, gate_w):
    def _A_ref(x, Lambda_re, Lambda_im, B_re, B_im, C_re, C_im, log_dt, Dskip):
        Bsz, L, H = x.shape
        Lam = Lambda_re + 1j * Lambda_im
        Bmat = B_re + 1j * B_im
        Cmat = C_re + 1j * C_im
        dt = torch.exp(log_dt)
        Lam_bar = torch.exp(dt * Lam)
        B_bar = ((Lam_bar - 1.0) / Lam)[:, None] * Bmat
        Bu = torch.einsum("bld,pd->blp", x + 0j, B_bar)
        h = torch.zeros_like(Bu[:, 0, :])
        hs = []
        for t in range(L):
            h = Lam_bar[None, :] * h + Bu[:, t, :]
            hs.append(h)
        hseq = torch.stack(hs, 1)
        y = 2.0 * torch.einsum("blp,dp->bld", hseq, Cmat).real + x * Dskip[None, None, :]
        return y

    def _B_ref(x, W_gate, W_up, W_down):
        gate = torch.einsum("bsd,df->bsf", x, W_gate)
        up = torch.einsum("bsd,df->bsf", x, W_up)
        gate = gate * (lambda x, dt: x.to(dt))(gate > 0, gate.dtype)
        h = gate * up
        return torch.einsum("bsf,fd->bsd", h, W_down)

    x = A_x
    g = _sigmoid((x * gate_w).sum(-1, keepdims=True))
    a = _A_ref(x, A_Lambda_re, A_Lambda_im, A_B_re, A_B_im, A_C_re, A_C_im, A_log_dt, A_Dskip)
    b = _B_ref(x, B_W_gate, B_W_up, B_W_down)
    return g * a + (1 - g) * b
```

```python
import sys

NAME = "gated_mix__ssm_conv_s5__glu_gated_reglu__prompt"

class Asm:
    def __init__(self):
        self.l = []
        self.uid = 0
    def __call__(self, s):
        self.l.append("    " + s)
    def lab(self, s):
        self.l.append(s + ":")
    def newlab(self, p="L"):
        self.uid += 1
        return "%s_%d" % (p, self.uid)
    def text(self):
        return "\n".join(self.l) + "\n"

def vr(b, n=1, f="v"):
    return "%s%d" % (f, b) if n == 1 else "%s[%d:%d]" % (f, b, b + n - 1)
def ar(b, n=1):
    return vr(b, n, "a")
def sr(b, n=1):
    return vr(b, n, "s")

WS_H = 0
WS_G = 24 << 20
WS_AGG = 25 << 20
WS_EX = 32 << 20
WS_SIZE = 64 << 20

def kptr(i):
    return 36 + 2 * i
P_X, P_LRE, P_LIM, P_BRE, P_BIM, P_CRE, P_CIM, P_LDT, P_DSK, P_BX, P_WG, P_WU, P_WD, P_GW, P_OUT, P_DBG, P_WS = range(17)

def srd(a, d, p, nbytes):
    a("s_mov_b32 s%d, s%d" % (d, kptr(p)))
    a("s_mov_b32 s%d, s%d" % (d + 1, kptr(p) + 1))
    a("s_mov_b32 s%d, 0x%x" % (d + 2, nbytes))
    a("s_mov_b32 s%d, 0x20000" % (d + 3))

def load_kernargs(a):
    a("s_load_dwordx16 s[36:51], s[0:1], 0")
    a("s_load_dwordx16 s[52:67], s[0:1], 64")
    a("s_load_dwordx2 s[68:69], s[0:1], 128")

class Lgkm:
    def __init__(self, a):
        self.a = a; self.n = 0; self.done = 0
    def issue(self, text):
        self.a(text); self.n += 1
        return self.n
    def need(self, ids):
        m = max(ids) if ids else 0
        if m > self.done:
            out = self.n - m
            assert out <= 15
            self.a("s_waitcnt lgkmcnt(%d)" % out)
            self.done = m
    def reset(self):
        self.done = self.n

def cmul_acc(a, dr, di, lr, li, sr_, si_, ur, ui, t0, t1):
    a("v_fma_f32 v%d, v%d, v%d, v%d" % (t0, lr, sr_, ur))
    a("v_fma_f32 v%d, v%d, v%d, v%d" % (t1, lr, si_, ui))
    return

STG = 69632
L_BR, L_BI, L_G, L_U, L_X = 0, 4096, 8192, 22528, 36864
L_T = 2 * STG
K1_LDS = L_T + 4096

def gen_k1(a, opt):
    LA = opt.get("k1_la", 6)
    NB = 8
    TU = opt.get("k1_tu", 4)
    ACCS = 0; ACCG = 64
    VDX = 176; VDW = 184; VDB = 191
    VP = 193
    VX = 197
    VW = 201
    VLAM = 204; VCOEF = 208; VL16 = 212; VL256 = 216; VLSEG = 220
    VLANE = 224; VSEG = 225; VC = 226; VQ = 227
    T0 = 228
    ACCU = 0; ABUF = 112; BPOOL = 144
    sX, sW, sB, sH, sD, sP = 4, 8, 12, 16, 20, 24
    S_W, S_MI, S_NJ, S_OX, S_OW, S_CNT = 28, 29, 30, 31, 32, 33
    S_M0 = 70
    ST = 80

    a.lab("k1_kernel")
    a("s_cmp_ge_u32 s2, 256")
    a("s_cbranch_scc1 k1_done")
    load_kernargs(a)
    a("v_lshrrev_b32 v%d, 6, v0" % T0)
    a("v_and_b32 v%d, 63, v0" % VLANE)
    a("v_readfirstlane_b32 s%d, v%d" % (S_W, T0))
    a("s_and_b32 s%d, s2, 7" % ST)
    a("s_lshr_b32 s%d, s2, 3" % (ST + 1))
    a("s_and_b32 s%d, s%d, 7" % (S_MI, ST + 1))
    a("s_lshr_b32 s%d, s%d, 3" % (ST + 1, ST + 1))
    a("s_lshl_b32 s%d, s%d, 2" % (ST, ST))
    a("s_add_u32 s%d, s%d, s%d" % (S_NJ, ST, ST + 1))
    a("v_and_b32 v%d, 15, v%d" % (VC, VLANE))
    a("v_lshrrev_b32 v%d, 4, v%d" % (VQ, VLANE))
    a("s_lshl_b32 s%d, s%d, 2" % (ST, S_W))
    a("v_add_u32 v%d, s%d, v%d" % (VSEG, ST, VQ))
    a("s_waitcnt lgkmcnt(0)")
    srd(a, sX, P_X, 2048 * 1024 * 2)
    a("s_cmp_lt_u32 s%d, 2" % S_W)
    a("s_cselect_b32 s%d, s%d, s%d" % (sW, kptr(P_WG), kptr(P_WU)))
    a("s_cselect_b32 s%d, s%d, s%d" % (sW + 1, kptr(P_WG) + 1, kptr(P_WU) + 1))
    a("s_mov_b32 s%d, 0x%x" % (sW + 2, 1024 * 3584 * 2))
    a("s_mov_b32 s%d, 0x20000" % (sW + 3))
    a("s_cselect_b32 s%d, s%d, s%d" % (sB, kptr(P_BRE), kptr(P_BIM)))
    a("s_cselect_b32 s%d, s%d, s%d" % (sB + 1, kptr(P_BRE) + 1, kptr(P_BIM) + 1))
    a("s_mov_b32 s%d, 0x%x" % (sB + 2, 1024 * 1024 * 2))
    a("s_mov_b32 s%d, 0x20000" % (sB + 3))
    srd(a, sH, P_WS, WS_SIZE)
    srd(a, sD, P_DBG, 256)

    PR = 240
    a("s_lshl_b32 s%d, s%d, 6" % (ST, S_NJ))
    a("v_lshl_add_u32 v%d, v%d, 1, s%d" % (T0, VC, ST))
    for k, p in enumerate((P_LRE, P_LIM, P_LDT)):
        srd(a, sP, p, 2048)
        a("buffer_load_ushort v%d, v%d, s[%d:%d], 0 offen" % (PR + 2 * k, T0, sP, sP + 3))
        a("buffer_load_ushort v%d, v%d, s[%d:%d], 0 offen offset:32" % (PR + 2 * k + 1, T0, sP, sP + 3))
    srd(a, sP, P_GW, 2048)
    a("v_lshlrev_b32 v%d, 5, v%d" % (T0 + 1, VLANE))
    a("buffer_load_dwordx4 v[16:19], v%d, s[%d:%d], 0 offen" % (T0 + 1, sP, sP + 3))
    a("buffer_load_dwordx4 v[20:23], v%d, s[%d:%d], 0 offen offset:16" % (T0 + 1, sP, sP + 3))
    a("s_lshl_b32 s%d, s2, 3" % ST)
    a("s_lshl_b32 s%d, s%d, 1" % (ST + 1, S_W))
    a("s_add_u32 s%d, s%d, s%d" % (ST + 4, ST, ST + 1))
    a("s_lshl_b32 s%d, s%d, 11" % (ST, ST + 4))
    a("buffer_load_dwordx4 v[0:3], v%d, s[%d:%d], s%d offen" % (T0 + 1, sX, sX + 3, ST))
    a("buffer_load_dwordx4 v[4:7], v%d, s[%d:%d], s%d offen offset:16" % (T0 + 1, sX, sX + 3, ST))
    a("buffer_load_dwordx4 v[8:11], v%d, s[%d:%d], s%d offen offset:2048" % (T0 + 1, sX, sX + 3, ST))
    a("buffer_load_dwordx4 v[12:15], v%d, s[%d:%d], s%d offen offset:2064" % (T0 + 1, sX, sX + 3, ST))

    t0, t1, t2, t3 = T0 + 2, T0 + 3, T0 + 4, T0 + 5
    a("s_lshl_b32 s%d, s%d, 8" % (ST, S_MI))
    a("s_lshl_b32 s%d, s%d, 6" % (ST + 1, S_W))
    a("s_add_u32 s%d, s%d, s%d" % (ST, ST, ST + 1))
    a("v_lshrrev_b32 v%d, 5, v%d" % (t0, VLANE))
    a("v_lshlrev_b32 v%d, 4, v%d" % (t0, t0))
    a("v_bfe_u32 v%d, v%d, 3, 2" % (t1, VLANE))
    a("v_add3_u32 v%d, v%d, v%d, s%d" % (t0, t0, t1, ST))
    a("v_lshlrev_b32 v%d, 11, v%d" % (t0, t0))
    a("v_and_b32 v%d, 7, v%d" % (t1, VLANE))
    a("v_xor_b32 v%d, v%d, v%d" % (t1, t1, VQ))
    a("v_xor_b32 v%d, 4, v%d" % (t2, t1))
    a("v_lshl_add_u32 v%d, v%d, 4, v%d" % (t1, t1, t0))
    a("v_lshl_add_u32 v%d, v%d, 4, v%d" % (t2, t2, t0))
    for i in range(8):
        off = ((i & 1) * 32 + (i >> 1) * 4) * 2048 - (i & 3) * 1024
        a("v_add_u32 v%d, 0x%x, v%d" % (VDX + i, off, t2 if i & 1 else t1))
    a("s_and_b32 s%d, s%d, 1" % (ST + 1, S_W))
    a("s_lshl_b32 s%d, s%d, 4" % (ST + 1, ST + 1))
    a("s_lshl_b32 s%d, s%d, 5" % (ST, S_NJ))
    a("s_add_u32 s%d, s%d, s%d" % (ST, ST, ST + 1))
    a("v_lshrrev_b32 v%d, 3, v%d" % (t0, VLANE))
    a("v_add_u32 v%d, s%d, v%d" % (t0, ST, t0))
    a("v_lshlrev_b32 v%d, 11, v%d" % (t0, t0))
    a("v_and_b32 v%d, 7, v%d" % (t1, VLANE))
    a("v_xor_b32 v%d, v%d, v%d" % (t1, t1, VQ))
    a("v_xor_b32 v%d, 4, v%d" % (t2, t1))
    a("v_lshl_add_u32 v%d, v%d, 4, v%d" % (VDB, t1, t0))
    a("v_lshl_add_u32 v%d, v%d, 4, v%d" % (t2, t2, t0))
    a("v_add_u32 v%d, 0x%x, v%d" % (VDB + 1, 8 * 2048 - 1024, t2))
    a("s_and_b32 s%d, s%d, 1" % (ST, S_W))
    a("s_mul_i32 s%d, s%d, 448" % (ST, ST))
    a("s_and_b32 s%d, s%d, 1" % (ST + 1, S_NJ))
    a("s_lshl_b32 s%d, s%d, 1" % (ST + 1, ST + 1))
    a("s_mul_i32 s%d, s%d, 224" % (ST + 2, S_NJ))
    a("s_movk_i32 s%d, 4682" % (ST + 3))
    a("s_movk_i32 s%d, 7168" % (ST + 5))
    for i in range(7):
        a("v_add_u32 v%d, s%d, v%d" % (t0, ST, VLANE))
        if i:
            a("v_add_u32 v%d, %d, v%d" % (t0, 64 * i, t0))
        a("v_mul_u32_u24 v%d, s%d, v%d" % (t1, ST + 3, t0))
        a("v_lshrrev_b32 v%d, 16, v%d" % (t1, t1))
        a("v_mul_u32_u24 v%d, 14, v%d" % (t2, t1))
        a("v_sub_u32 v%d, v%d, v%d" % (t0, t0, t2))
        a("v_add_u32 v%d, s%d, v%d" % (t0, ST + 1, t0))
        a("v_subrev_u32 v%d, 14, v%d" % (t2, t0))
        a("v_min_u32 v%d, v%d, v%d" % (t0, t0, t2))
        a("v_and_b32 v%d, 0x33, v%d" % (t2, t1))
        a("v_and_b32 v%d, 4, v%d" % (t3, t1))
        a("v_lshl_or_b32 v%d, v%d, 1, v%d" % (t2, t3, t2))
        a("v_and_b32 v%d, 8, v%d" % (t3, t1))
        a("v_lshrrev_b32 v%d, 1, v%d" % (t3, t3))
        a("v_or_b32 v%d, v%d, v%d" % (t2, t2, t3))
        a("v_mul_u32_u24 v%d, s%d, v%d" % (t2, ST + 5, t2))
        a("v_lshl_add_u32 v%d, v%d, 4, v%d" % (t2, t0, t2))
        a("v_add_u32 v%d, s%d, v%d" % (t2, ST + 2, t2))
        a("v_subrev_u32 v%d, 0x%x, v%d" % (VDW + i, (i & 3) * 1024, t2))
    for par in range(2):
        a("s_lshl_b32 s%d, s%d, 13" % (ST, S_W))
        a("s_add_u32 s%d, s%d, 0x%x" % (S_M0 + 0 + par, ST, L_X + par * STG))
        a("s_add_u32 s%d, s%d, 0x%x" % (S_M0 + 2 + par, ST, L_X + par * STG + 4096))
        a("s_mul_i32 s%d, s%d, 7168" % (ST, S_W))
        a("s_add_u32 s%d, s%d, 0x%x" % (S_M0 + 4 + par, ST, L_G + par * STG))
        a("s_add_u32 s%d, s%d, 0x%x" % (S_M0 + 6 + par, ST, L_G + par * STG + 4096))
        a("s_lshl_b32 s%d, s%d, 11" % (ST, S_W))
        a("s_add_u32 s%d, s%d, 0x%x" % (S_M0 + 8 + par, ST, par * STG))
    a("s_mov_b32 s%d, 0" % S_OX)
    a("s_mov_b32 s%d, 0" % S_OW)

    def dma_list(par):
        l = []
        for i in range(7):
            if i % 4 == 0:
                l.append(("m0", "s_mov_b32 m0, s%d" % (S_M0 + 4 + (i // 4) * 2 + par)))
            l.append(("dma", "buffer_load_dwordx4 v%d, s[%d:%d], s%d offen offset:%d lds" % (VDW + i, sW, sW + 3, S_OW, (i & 3) * 1024)))
        l.append(("m0", "s_mov_b32 m0, s%d" % (S_M0 + 8 + par)))
        for i in range(2):
            l.append(("dma", "buffer_load_dwordx4 v%d, s[%d:%d], s%d offen offset:%d lds" % (VDB + i, sB, sB + 3, S_OX, i * 1024)))
        for i in range(8):
            if i % 4 == 0:
                l.append(("m0", "s_mov_b32 m0, s%d" % (S_M0 + (i // 4) * 2 + par)))
            l.append(("dma", "buffer_load_dwordx4 v%d, s[%d:%d], s%d offen offset:%d lds" % (VDX + i, sX, sX + 3, S_OX, (i & 3) * 1024)))
        l.append(("adv", "s_add_u32 s%d, s%d, 128" % (S_OX, S_OX)))
        l.append(("adv", "s_add_u32 s%d, s%d, 0x%x" % (S_OW, S_OW, 64 * 7168)))
        return l

    for kind, t in dma_list(0):
        a(t)
        if kind == "m0":
            a("s_nop 0")

    a("v_lshrrev_b32 v%d, 1, v%d" % (t0, VC))
    a("v_xor_b32 v%d, v%d, v%d" % (t0, t0, VQ))
    a("v_lshlrev_b32 v%d, 7, v%d" % (t1, VC))
    a("v_lshl_add_u32 v%d, v%d, 4, v%d" % (VP, t0, t1))
    a("v_xor_b32 v%d, 64, v%d" % (VP + 2, VP))
    a("v_add_u32 v%d, 0x%x, v%d" % (VP + 1, STG, VP))
    a("v_add_u32 v%d, 0x%x, v%d" % (VP + 3, STG, VP + 2))
    a("s_lshl_b32 s%d, s%d, 13" % (ST, S_W))
    a("s_add_u32 s%d, s%d, 0x%x" % (ST, ST, L_X))
    for k in range(4):
        a("v_add_u32 v%d, s%d, v%d" % (VX + k, ST, VP + k))
    a("v_lshrrev_b32 v%d, 5, v%d" % (t0, VLANE))
    a("v_lshlrev_b32 v%d, 4, v%d" % (t0, t0))
    a("v_bfe_u32 v%d, v%d, 2, 3" % (t1, VLANE))
    a("v_add_u32 v%d, v%d, v%d" % (t0, t0, t1))
    a("v_mul_u32_u24 v%d, 0xe0, v%d" % (t0, t0))
    a("v_and_b32 v%d, 3, v%d" % (t1, VLANE))
    a("v_lshl_add_u32 v%d, v%d, 3, v%d" % (VW, t1, t0))
    a("v_add_u32 v%d, 0x%x, v%d" % (VW + 1, STG, VW))

    a("s_waitcnt vmcnt(17)")
    a("v_mov_b32 v24, 0")
    a("v_mov_b32 v25, 0")
    for d in range(8):
        a("v_lshlrev_b32 v26, 16, v%d" % (16 + d))
        a("v_and_b32 v27, 0xffff0000, v%d" % (16 + d))
        for r in range(2):
            x = r * 8 + d
            a("v_lshlrev_b32 v28, 16, v%d" % x)
            a("v_and_b32 v29, 0xffff0000, v%d" % x)
            a("v_mul_f32 v28, v28, v26")
            a("v_mul_f32 v29, v29, v27")
            a("v_cvt_pk_bf16_f32 v28, v28, v29")
            a("v_lshlrev_b32 v29, 16, v28")
            a("v_and_b32 v28, 0xffff0000, v28")
            a("v_add_f32 v%d, v%d, v29" % (24 + r, 24 + r))
            a("v_add_f32 v%d, v%d, v28" % (24 + r, 24 + r))
    for dpp in ("row_shr:1", "row_shr:2", "row_shr:4", "row_shr:8"):
        a("s_nop 1")
        a("v_add_f32_dpp v24, v24, v24 %s row_mask:0xf bank_mask:0xf bound_ctrl:0" % dpp)
        a("v_add_f32_dpp v25, v25, v25 %s row_mask:0xf bank_mask:0xf bound_ctrl:0" % dpp)
    a("s_nop 1")
    a("v_add_f32_dpp v24, v24, v24 row_bcast:15 row_mask:0xa bank_mask:0xf")
    a("v_add_f32_dpp v25, v25, v25 row_bcast:15 row_mask:0xa bank_mask:0xf")
    a("s_nop 1")
    a("v_add_f32_dpp v24, v24, v24 row_bcast:31 row_mask:0xc bank_mask:0xf")
    a("v_add_f32_dpp v25, v25, v25 row_bcast:31 row_mask:0xc bank_mask:0xf")
    a("v_cvt_pk_bf16_f32 v26, v24, v25")
    a("v_lshlrev_b32 v24, 16, v26")
    a("v_and_b32 v25, 0xffff0000, v26")
    a("v_mul_f32 v24, 0xbfb8aa3b, v24")
    a("v_mul_f32 v25, 0xbfb8aa3b, v25")
    a("v_exp_f32 v24, v24")
    a("v_exp_f32 v25, v25")
    a("s_nop 0")
    a("v_add_f32 v24, 1.0, v24")
    a("v_add_f32 v25, 1.0, v25")
    a("v_rcp_f32 v24, v24")
    a("v_rcp_f32 v25, v25")
    a("s_nop 0")
    a("v_cvt_pk_bf16_f32 v26, v24, v25")
    a("v_lshlrev_b32 v24, 16, v26")
    a("v_and_b32 v25, 0xffff0000, v26")
    a("s_lshl_b32 s%d, s%d, 2" % (ST, ST + 4))
    a("s_add_u32 s%d, s%d, 0x%x" % (ST, ST, WS_G))
    a("s_mov_b32 exec_lo, 0")
    a("s_mov_b32 exec_hi, 0x80000000")
    a("buffer_store_dwordx2 v[24:25], off, s[%d:%d], s%d" % (sH, sH + 3, ST))
    a("s_mov_b64 exec, -1")

    for k in range(6):
        a("v_lshlrev_b32 v%d, 16, v%d" % (PR + k, PR + k))
    for cg in range(2):
        lre, lim, ldt = PR + cg, PR + 2 + cg, PR + 4 + cg
        x0, x1, x2, x3 = 30, 31, 32, 33
        a("v_mul_f32 v%d, 0x3fb8aa3b, v%d" % (x0, ldt))
        a("v_exp_f32 v%d, v%d" % (x0, x0))
        a("s_nop 0")
        a("v_cvt_pk_bf16_f32 v%d, v%d, v%d" % (x0, x0, x0))
        a("v_lshlrev_b32 v%d, 16, v%d" % (x0, x0))
        a("v_mul_f32 v%d, v%d, v%d" % (x1, x0, lre))
        a("v_mul_f32 v%d, v%d, v%d" % (x2, x0, lim))
        a("v_mul_f32 v%d, 0x3fb8aa3b, v%d" % (x1, x1))
        a("v_exp_f32 v%d, v%d" % (x1, x1))
        a("v_mul_f32 v%d, 0.15915494, v%d" % (x2, x2))
        a("v_fract_f32 v%d, v%d" % (x2, x2))
        a("v_cos_f32 v%d, v%d" % (x3, x2))
        a("v_sin_f32 v%d, v%d" % (x2, x2))
        a("s_nop 0")
        a("v_mul_f32 v%d, v%d, v%d" % (VLAM + cg, x1, x3))
        a("v_mul_f32 v%d, v%d, v%d" % (VLAM + 2 + cg, x1, x2))
        a("v_add_f32 v%d, -1.0, v%d" % (x0, VLAM + cg))
        a("v_mul_f32 v%d, v%d, v%d" % (x1, lre, lre))
        a("v_fmac_f32 v%d, v%d, v%d" % (x1, lim, lim))
        a("v_rcp_f32 v%d, v%d" % (x1, x1))
        a("v_mul_f32 v%d, v%d, v%d" % (x2, x0, lre))
        a("v_fmac_f32 v%d, v%d, v%d" % (x2, VLAM + 2 + cg, lim))
        a("v_mul_f32 v%d, v%d, v%d" % (x3, VLAM + 2 + cg, lre))
        a("v_fma_f32 v%d, -v%d, v%d, v%d" % (x3, x0, lim, x3))
        a("v_mul_f32 v%d, v%d, v%d" % (VCOEF + cg, x2, x1))
        a("v_mul_f32 v%d, v%d, v%d" % (VCOEF + 2 + cg, x3, x1))
        pr, pi = 34, 35
        a("v_mov_b32 v%d, v%d" % (pr, VLAM + cg))
        a("v_mov_b32 v%d, v%d" % (pi, VLAM + 2 + cg))
        def square():
            a("v_mul_f32 v%d, v%d, v%d" % (x0, pi, pi))
            a("v_mul_f32 v%d, v%d, v%d" % (x1, pr, pi))
            a("v_fma_f32 v%d, v%d, v%d, -v%d" % (pr, pr, pr, x0))
            a("v_add_f32 v%d, v%d, v%d" % (pi, x1, x1))
        for _ in range(4):
            square()
        a("v_mov_b32 v%d, v%d" % (VL16 + cg, pr))
        a("v_mov_b32 v%d, v%d" % (VL16 + 2 + cg, pi))
        lr_, li_ = VLSEG + cg, VLSEG + 2 + cg
        a("v_mov_b32 v%d, 1.0" % lr_)
        a("v_mov_b32 v%d, 0" % li_)
        for b in range(4):
            a("v_and_b32 v%d, %d, v%d" % (x2, 1 << b, VSEG))
            a("v_cmp_ne_u32 vcc, 0, v%d" % x2)
            a("v_mul_f32 v%d, v%d, v%d" % (x0, lr_, pr))
            a("v_fma_f32 v%d, -v%d, v%d, v%d" % (x0, li_, pi, x0))
            a("v_mul_f32 v%d, v%d, v%d" % (x1, lr_, pi))
            a("v_fmac_f32 v%d, v%d, v%d" % (x1, li_, pr))
            a("v_cndmask_b32 v%d, v%d, v%d, vcc" % (lr_, lr_, x0))
            a("v_cndmask_b32 v%d, v%d, v%d, vcc" % (li_, li_, x1))
            square()
        a("v_mov_b32 v%d, v%d" % (VL256 + cg, pr))
        a("v_mov_b32 v%d, v%d" % (VL256 + 2 + cg, pi))
    for i in range(176):
        a("v_mov_b32 v%d, 0" % i)
    for i in range(112):
        a("v_accvgpr_write_b32 a%d, 0" % i)
    a("s_waitcnt vmcnt(0)")
    a("s_barrier")

    lg = Lgkm(a)
    NU = 36
    def unit_info(par, u):
        s, j = divmod(u, 18)
        pb = BPOOL + ((par * NU + u) % NB) * 4
        if j < 4:
            cg, isim = j >> 1, j & 1
            reads = ["ds_read_b128 %s, v%d offset:%d" % (ar(pb, 4), VP + s * 2 + par, isim * 4096 + cg * 2048)]
            mf = ["v_mfma_f32_16x16x32_bf16 %s, %s, %s, %s" % (vr(ACCS + (j * 4 + mt) * 4, 4), ar(ABUF + (s * 4 + mt) * 4, 4), ar(pb, 4),
                                                               vr(ACCS + (j * 4 + mt) * 4, 4)) for mt in range(4)]
        else:
            p, isup = (j - 4) >> 1, (j - 4) & 1
            reads = ["ds_read_b64_tr_b16 %s, v%d offset:%d" % (ar(pb + 2 * h, 2), VW + par, L_G + isup * 14336 + (32 * s + 8 * h) * 224 + p * 32)
                     for h in range(2)]
            acc = (lambda mt: ar(ACCU + (p * 4 + mt) * 4, 4)) if isup else (lambda mt: vr(ACCG + (p * 4 + mt) * 4, 4))
            mf = ["v_mfma_f32_16x16x32_bf16 %s, %s, %s, %s" % (acc(mt), ar(pb, 4), ar(ABUF + (s * 4 + mt) * 4, 4), acc(mt)) for mt in range(4)]
        return s, reads, mf

    def a_reads(par, s):
        return ["ds_read_b128 %s, v%d offset:%d" % (ar(ABUF + (s * 4 + mt) * 4, 4), VX + s * 2 + par, mt * 2048) for mt in range(4)]

    def body(par, first, last):
        nslots = (TU + NU - TU) * 4 + (TU * 4 if last else 0)
        fill = [[] for _ in range(nslots + 1)]
        rid = {}
        seq = [(("A", 0, mt), r) for mt, r in enumerate(a_reads(par, 0))]
        for u in range(LA):
            _, reads, _ = unit_info(par, u)
            seq += [(("B", u), r) for r in reads]
        assert len(seq) <= TU * 4
        for k, it in enumerate(seq):
            fill[k].append(("lds", it))
        base = TU * 4
        for u in range(LA, NU):
            _, reads, _ = unit_info(par, u)
            for k, r in enumerate(reads):
                fill[base + 4 * (u - LA) + 2 * k].append(("lds", (("B", u), r)))
        for mt, r in enumerate(a_reads(par, 1)):
            fill[base + 4 * (2 + 2 * mt) + 1].append(("lds", (("A", 1, mt), r)))
        if not last and not opt.get("k1_nodma"):
            pos = opt.get("k1_dma0", len(seq))
            step = opt.get("k1_dmastep", 2)
            if pos % 2 == 0:
                pos += 1
            for kind, t in dma_list(par ^ 1):
                fill[pos].append(("raw", t))
                if kind == "dma":
                    pos += step
                elif kind == "m0":
                    pos += 1
        mfl = []
        if not first:
            for u in range(NU - TU, NU):
                s, _, mf = unit_info(par ^ 1, u)
                mfl += [(m, None) for m in mf]
        else:
            mfl += [(None, None)] * (TU * 4)
        for u in range(NU if last else NU - TU):
            s, _, mf = unit_info(par, u)
            mfl += [(m, [("B", u), ("A", s, mt)]) for mt, m in enumerate(mf)]
        for k, (m, deps) in enumerate(mfl):
            for kind, it in fill[k]:
                if kind == "lds":
                    key, t = it
                    if opt.get("k1_nolds"):
                        rid.setdefault(key, []).append(0)
                    else:
                        rid.setdefault(key, []).append(lg.issue(t))
                else:
                    a(it)
                    if m is None and it.startswith("s_mov_b32 m0"):
                        a("s_nop 0")
            if m is not None:
                if deps:
                    ids = []
                    for d in deps:
                        ids += rid[d]
                    lg.need(ids)
                if not opt.get("k1_nomfma"):
                    a(m)
                else:
                    a("s_nop 0")
        for kind, it in fill[len(mfl)]:
            assert False
        if not last:
            a("s_waitcnt vmcnt(0) lgkmcnt(0)")
            lg.reset()
            a("s_barrier")

    body(0, True, False)
    a("s_mov_b32 s%d, 7" % S_CNT)
    a(".p2align 6")
    a.lab("k1_loop")
    body(1, False, False)
    body(0, False, False)
    a("s_sub_u32 s%d, s%d, 1" % (S_CNT, S_CNT))
    a("s_cmp_lg_u32 s%d, 0" % S_CNT)
    a("s_cbranch_scc1 k1_loop")
    body(1, False, True)
    a("s_nop 7")

    S = 228; TT = 232
    for cg in range(2):
        a("v_mov_b32 v%d, v%d" % (S + cg, ACCS + 32 * cg))
        a("v_mov_b32 v%d, v%d" % (S + 2 + cg, ACCS + 32 * cg + 16))
    for k in range(1, 16):
        for cg in range(2):
            a("v_fma_f32 v%d, v%d, v%d, v%d" % (TT + cg, VLAM + cg, S + cg, ACCS + 32 * cg + k))
            a("v_fma_f32 v%d, v%d, v%d, v%d" % (TT + 2 + cg, VLAM + cg, S + 2 + cg, ACCS + 32 * cg + 16 + k))
        for cg in range(2):
            a("v_fma_f32 v%d, -v%d, v%d, v%d" % (TT + cg, VLAM + 2 + cg, S + 2 + cg, TT + cg))
            a("v_fma_f32 v%d, v%d, v%d, v%d" % (S + 2 + cg, VLAM + 2 + cg, S + cg, TT + 2 + cg))
        for cg in range(2):
            a("v_mov_b32 v%d, v%d" % (S + cg, TT + cg))
    va = 236
    a("v_lshlrev_b32 v%d, 4, v%d" % (va + 1, VC))
    a("v_add_u32 v%d, 0x%x, v%d" % (va + 1, L_T, va + 1))
    a("v_lshl_add_u32 v%d, v%d, 8, v%d" % (va, VSEG, va + 1))
    a("ds_write_b128 v%d, v[%d:%d]" % (va, S, S + 3))
    a("s_waitcnt lgkmcnt(0)")
    a("s_barrier")
    P = 240
    TB = 176
    for k in range(4):
        a("v_mov_b32 v%d, 0" % (P + k))
    def pk_cmul_add(D, L, X, U, t):
        a("v_pk_fma_f32 v[%d:%d], v[%d:%d], v[%d:%d], v[%d:%d]" % (t, t + 1, L, L + 1, X, X + 1, U, U + 1))
        a("v_pk_fma_f32 v[%d:%d], v[%d:%d], v[%d:%d], v[%d:%d]" % (t + 2, t + 3, L, L + 1, X + 2, X + 3, U + 2, U + 3))
        a("v_pk_fma_f32 v[%d:%d], v[%d:%d], v[%d:%d], v[%d:%d] neg_lo:[1,0,0] neg_hi:[1,0,0]" % (t, t + 1, L + 2, L + 3, X + 2, X + 3, t, t + 1))
        a("v_pk_fma_f32 v[%d:%d], v[%d:%d], v[%d:%d], v[%d:%d]" % (D + 2, D + 3, L + 2, L + 3, X, X + 1, t + 2, t + 3))
        a("v_mov_b32 v%d, v%d" % (D, t))
        a("v_mov_b32 v%d, v%d" % (D + 1, t + 1))
    for chunk in ((0, 7), (7, 14), (14, 15)):
        for s_ in range(*chunk):
            a("ds_read_b128 v[%d:%d], v%d offset:%d" % (TB + 4 * (s_ - chunk[0]), TB + 4 * (s_ - chunk[0]) + 3, va + 1, s_ * 256))
        a("s_waitcnt lgkmcnt(0)")
        for s_ in range(*chunk):
            a("v_cmpx_lt_u32 vcc, %d, v%d" % (s_, VSEG))
            pk_cmul_add(P, VL16, P, TB + 4 * (s_ - chunk[0]), TT)
    a("s_mov_b64 exec, -1")
    AG = 244
    pk_cmul_add(AG, VL16, P, S, TT)
    a("s_lshl_b32 s%d, s%d, 3" % (ST, S_NJ))
    a("s_lshl_b32 s%d, s%d, 8" % (ST + 6, ST))
    a("s_add_u32 s%d, s%d, 0x%x" % (ST + 6, ST + 6, WS_AGG))
    a("s_lshl_b32 s%d, s%d, 8" % (ST, S_MI))
    a("s_add_u32 s%d, s%d, s%d" % (ST, ST, ST + 6))
    a("v_lshlrev_b32 v%d, 4, v%d" % (va + 2, VC))
    a("s_lshl_b32 s%d, s%d, 2" % (ST + 7, S_NJ))
    a("s_cmp_lg_u32 s%d, 3" % S_W)
    a("s_cbranch_scc1 k1_nopub")
    a("s_mov_b32 exec_lo, 0")
    a("s_mov_b32 exec_hi, 0xffff0000")
    a("buffer_store_dwordx4 v[%d:%d], v%d, s[%d:%d], s%d offen sc1" % (AG, AG + 3, va + 2, sH, sH + 3, ST))
    a("s_mov_b64 exec, -1")
    a.lab("k1_nopub")

    a("s_lshl_b32 s%d, s%d, 2" % (ST, S_MI))
    a("s_add_u32 s%d, s%d, s%d" % (ST, ST, S_W))
    a("s_mul_i32 s%d, s%d, 176" % (ST + 8, ST))
    a("s_and_b32 s%d, s%d, 1" % (ST + 1, S_NJ))
    a("s_mul_i32 s%d, s%d, 7" % (ST + 2, S_NJ))
    a("s_add_u32 s%d, s%d, s%d" % (ST + 3, ST + 2, ST + 1))
    a("s_lshr_b32 s%d, s%d, 1" % (ST + 3, ST + 3))
    a("s_add_u32 s%d, s%d, s%d" % (ST + 3, ST + 3, ST + 8))
    a("s_lshl_b32 s%d, s%d, 12" % (ST + 3, ST + 3))
    a("s_mul_i32 s%d, s%d, 7" % (ST + 5, ST + 1))
    a("s_add_u32 s%d, s%d, 6" % (ST + 2, ST + 2))
    a("s_sub_u32 s%d, s%d, s%d" % (ST + 2, ST + 2, ST + 5))
    a("s_lshr_b32 s%d, s%d, 1" % (ST + 2, ST + 2))
    a("s_add_u32 s%d, s%d, s%d" % (ST + 2, ST + 2, ST + 8))
    a("s_lshl_b32 s%d, s%d, 12" % (ST + 2, ST + 2))
    a("s_lshl_b32 s%d, s%d, 3" % (ST + 1, ST + 1))
    a("s_add_u32 s%d, s%d, s%d" % (ST + 2, ST + 2, ST + 1))
    VL16B = 239
    a("v_lshlrev_b32 v%d, 4, v%d" % (VL16B, VLANE))
    E = 176
    def glu_tile(p, mt, dst):
        g = ACCG + (p * 4 + mt) * 4; u = ACCU + (p * 4 + mt) * 4
        e = E + 16
        for r in range(4):
            a("v_accvgpr_read_b32 v%d, a%d" % (e + r, u + r))
        if opt.get("fast_glu"):
            for r in range(4):
                a("v_max_f32 v%d, 0, v%d" % (g + r, g + r))
            for h in range(2):
                a("v_pk_mul_f32 v[%d:%d], v[%d:%d], v[%d:%d]" % (g + 2 * h, g + 2 * h + 1, g + 2 * h, g + 2 * h + 1, e + 2 * h, e + 2 * h + 1))
            for h in range(2):
                a("v_cvt_pk_bf16_f32 v%d, v%d, v%d" % (dst + h, g + 2 * h, g + 2 * h + 1))
            return
        for h in range(2):
            a("v_cvt_pk_bf16_f32 v%d, v%d, v%d" % (g + 2 * h, g + 2 * h, g + 2 * h + 1))
            a("v_cvt_pk_bf16_f32 v%d, v%d, v%d" % (e + 2 * h, e + 2 * h, e + 2 * h + 1))
        for h in range(2):
            a("v_pk_max_i16 v%d, v%d, 0" % (g + 2 * h, g + 2 * h))
        for h in range(2):
            a("v_and_b32 v%d, 0xffff0000, v%d" % (g + 2 * h + 1, g + 2 * h))
            a("v_lshlrev_b32 v%d, 16, v%d" % (g + 2 * h, g + 2 * h))
            a("v_and_b32 v%d, 0xffff0000, v%d" % (e + 2 * h + 1, e + 2 * h))
            a("v_lshlrev_b32 v%d, 16, v%d" % (e + 2 * h, e + 2 * h))
        for h in range(2):
            a("v_pk_mul_f32 v[%d:%d], v[%d:%d], v[%d:%d]" % (g + 2 * h, g + 2 * h + 1, g + 2 * h, g + 2 * h + 1, e + 2 * h, e + 2 * h + 1))
        for h in range(2):
            a("v_cvt_pk_bf16_f32 v%d, v%d, v%d" % (dst + h, g + 2 * h, g + 2 * h + 1))
    hst = opt.get("h_store_flags", "")
    for pp in range(3):
        for mt in range(4):
            d = E + (mt % 4) * 4
            glu_tile(2 * pp, mt, d)
            glu_tile(2 * pp + 1, mt, d + 2)
            a("buffer_store_dwordx4 v[%d:%d], v%d, s[%d:%d], s%d offen offset:%d %s" % (d, d + 3, VL16B, sH, sH + 3, ST + 3, mt * 1024, hst))
        a("s_add_u32 s%d, s%d, 4096" % (ST + 3, ST + 3))
        if pp == 0:
            a("s_cmp_lg_u32 s%d, 3" % S_W)
            a("s_cbranch_scc1 k1_noflag")
            a("s_waitcnt vmcnt(4)")
            a("s_lshl_b32 s%d, 1, s%d" % (ST, S_MI))
            a("v_mov_b32 v%d, s%d" % (TT, ST))
            a("s_mov_b64 exec, 1")
            a("buffer_atomic_or v%d, off, s[%d:%d], s%d sc1" % (TT, sD, sD + 3, ST + 7))
            a("s_mov_b64 exec, -1")
            a.lab("k1_noflag")
    for mt in range(4):
        d = E + (mt % 4) * 4
        glu_tile(6, mt, d)
        a("buffer_store_dwordx2 v[%d:%d], v%d, s[%d:%d], s%d offen offset:%d %s" % (d, d + 1, VL16B, sH, sH + 3, ST + 2, mt * 1024, hst))

    CI = 244
    for k in range(4):
        a("v_mov_b32 v%d, 0" % (CI + k))
    a("s_cmp_eq_u32 s%d, 0" % S_MI)
    a("s_cbranch_scc1 k1_nocarry")
    a("s_lshl_b32 s%d, 1, s%d" % (ST, S_MI))
    a("s_sub_u32 s%d, s%d, 1" % (ST, ST))
    a("s_mov_b32 s%d, 0x40000" % (ST + 9))
    a.lab("k1_poll")
    a("buffer_load_dword v%d, off, s[%d:%d], s%d sc1" % (TT, sD, sD + 3, ST + 7))
    a("s_waitcnt vmcnt(0)")
    a("v_readfirstlane_b32 s%d, v%d" % (ST + 1, TT))
    a("s_and_b32 s%d, s%d, s%d" % (ST + 1, ST + 1, ST))
    a("s_cmp_eq_u32 s%d, s%d" % (ST + 1, ST))
    a("s_cbranch_scc1 k1_ready")
    a("s_sleep 2")
    a("s_sub_u32 s%d, s%d, 1" % (ST + 9, ST + 9))
    a("s_cmp_lg_u32 s%d, 0" % (ST + 9))
    a("s_cbranch_scc1 k1_poll")
    a.lab("k1_ready")
    LB = 64
    for m in range(7):
        a("buffer_load_dwordx4 v[%d:%d], v%d, s[%d:%d], s%d offen offset:%d sc1" % (LB + 4 * m, LB + 4 * m + 3, va + 2, sH, sH + 3, ST + 6, m * 256))
    a("s_waitcnt vmcnt(0)")
    for m in range(7):
        pk_cmul_add(CI, VL256, CI, LB + 4 * m, TT)
        if m < 6:
            a("s_cmp_eq_u32 s%d, %d" % (S_MI, m + 1))
            a("s_cbranch_scc1 k1_nocarry")
    a.lab("k1_nocarry")
    pk_cmul_add(S, VLSEG, CI, P, TT)
    for k in range(16):
        for cg in range(2):
            a("v_fma_f32 v%d, v%d, v%d, v%d" % (TT + cg, VLAM + cg, S + cg, ACCS + 32 * cg + k))
            a("v_fma_f32 v%d, v%d, v%d, v%d" % (TT + 2 + cg, VLAM + cg, S + 2 + cg, ACCS + 32 * cg + 16 + k))
        for cg in range(2):
            a("v_fma_f32 v%d, -v%d, v%d, v%d" % (TT + cg, VLAM + 2 + cg, S + 2 + cg, TT + cg))
            a("v_fma_f32 v%d, v%d, v%d, v%d" % (S + 2 + cg, VLAM + 2 + cg, S + cg, TT + 2 + cg))
        for cg in range(2):
            a("v_mov_b32 v%d, v%d" % (S + cg, TT + cg))
        for cg in range(2):
            a("v_mul_f32 v%d, v%d, v%d" % (TT + cg, VCOEF + cg, S + cg))
            a("v_mul_f32 v%d, v%d, v%d" % (TT + 2 + cg, VCOEF + cg, S + 2 + cg))
        for cg in range(2):
            a("v_fma_f32 v%d, -v%d, v%d, v%d" % (ACCS + 32 * cg + k, VCOEF + 2 + cg, S + 2 + cg, TT + cg))
            a("v_fma_f32 v%d, -v%d, v%d, -v%d" % (ACCS + 32 * cg + 16 + k, VCOEF + 2 + cg, S + cg, TT + 2 + cg))
    vw_, vr_ = 236, 237
    a("s_mul_i32 s%d, s%d, 8704" % (ST, S_W))
    a("v_mul_u32_u24 v%d, 0x88, v%d" % (vw_, VC))
    a("v_lshl_add_u32 v%d, v%d, 3, v%d" % (vw_, VQ, vw_))
    a("v_add_u32 v%d, s%d, v%d" % (vw_, ST, vw_))
    a("v_bfe_u32 v%d, v%d, 2, 2" % (vr_, VLANE))
    a("v_lshl_add_u32 v%d, v%d, 3, v%d" % (vr_, VQ, vr_))
    a("v_mul_u32_u24 v%d, 0x88, v%d" % (vr_, vr_))
    a("v_and_b32 v%d, 3, v%d" % (TT, VLANE))
    a("v_lshl_add_u32 v%d, v%d, 3, v%d" % (vr_, TT, vr_))
    a("v_add_u32 v%d, s%d, v%d" % (vr_, ST, vr_))
    for cg in range(2):
        for isim in range(2):
            for mt in range(4):
                b = ACCS + 32 * cg + 16 * isim + 4 * mt
                a("v_cvt_pk_bf16_f32 v%d, v%d, v%d" % (b, b, b + 1))
                a("v_cvt_pk_bf16_f32 v%d, v%d, v%d" % (b + 1, b + 2, b + 3))
                a("ds_write_b64 v%d, v[%d:%d] offset:%d" % (vw_, b, b + 1, isim * 4352 + cg * 2176 + mt * 32))
    a("s_waitcnt lgkmcnt(0)")
    O = 64
    for isim in range(2):
        for mt in range(4):
            for h in range(2):
                o = O + (isim * 4 + mt) * 4 + 2 * h
                a("ds_read_b64_tr_b16 v[%d:%d], v%d offset:%d" % (o, o + 1, vr_, isim * 4352 + h * 544 + mt * 32))
    a("s_lshr_b32 s%d, s%d, 1" % (ST, S_NJ))
    a("s_lshl_b32 s%d, s%d, 2" % (ST, ST))
    a("s_and_b32 s%d, s%d, 1" % (ST + 1, S_NJ))
    a("s_add_u32 s%d, s%d, s%d" % (ST, ST, ST + 1))
    a("s_add_u32 s%d, s%d, 112" % (ST, ST))
    a("s_add_u32 s%d, s%d, s%d" % (ST, ST, ST + 8))
    a("s_lshl_b32 s%d, s%d, 12" % (ST, ST))
    a("s_add_u32 s%d, s%d, 8192" % (ST + 1, ST))
    a("s_waitcnt lgkmcnt(0)")
    for isim in range(2):
        for mt in range(4):
            o = O + (isim * 4 + mt) * 4
            a("buffer_store_dwordx4 v[%d:%d], v%d, s[%d:%d], s%d offen offset:%d %s" % (o, o + 3, VL16B, sH, sH + 3, ST + isim, mt * 1024, hst))
    a.lab("k1_done")
    a("s_endpgm")


K2_LDS = 65536

def gen_k2(a, opt):
    LA = opt.get("k2_la", 5)
    NB = 8
    TU = opt.get("k2_tu", 3)
    ACC1 = 0
    BPOOL = 128
    VWR = 160
    VCR = 168
    VDG = 170
    VDC = 174
    VA = 178
    VLANE = 180; VC = 181; VQ = 182
    VG = 184
    VXD = 188
    VDS = 204
    VOUT = 208
    T0 = 212
    ACC2 = 0
    ARING = 128
    sH, sWD, sCR, sCI, sD, sO, sP = 4, 8, 12, 16, 20, 24, 72
    S_W, S_MI, S_NI, S_S, S_OA, S_OB = 28, 29, 30, 31, 32, 33
    S_M0 = 34
    S_TILE = 35
    ST = 80
    NST = 22

    a.lab("k2_kernel")
    a("s_cmp_ge_u32 s2, 256")
    a("s_cbranch_scc1 k2_done")
    load_kernargs(a)
    a("v_lshrrev_b32 v%d, 6, v0" % T0)
    a("v_and_b32 v%d, 63, v0" % VLANE)
    a("v_readfirstlane_b32 s%d, v%d" % (S_W, T0))
    a("s_and_b32 s%d, s2, 7" % ST)
    a("s_lshr_b32 s%d, s%d, 1" % (S_S, ST))
    a("s_and_b32 s%d, s%d, 1" % (ST, ST))
    a("s_lshl_b32 s%d, s%d, 5" % (ST, ST))
    a("s_lshr_b32 s%d, s2, 3" % (ST + 1))
    a("s_add_u32 s%d, s%d, s%d" % (S_TILE, ST, ST + 1))
    a("s_lshr_b32 s%d, s%d, 3" % (S_MI, S_TILE))
    a("s_and_b32 s%d, s%d, 7" % (S_NI, S_TILE))
    a("v_and_b32 v%d, 15, v%d" % (VC, VLANE))
    a("v_lshrrev_b32 v%d, 4, v%d" % (VQ, VLANE))
    a("s_lshl_b32 s%d, s%d, 12" % (S_M0, S_W))
    a("v_lshlrev_b32 v%d, 4, v%d" % (VA, VLANE))
    a("v_add_u32 v%d, 0x1000, v%d" % (VA + 1, VA))
    t0, t1, t2, t3 = T0, T0 + 1, T0 + 2, T0 + 3
    a("s_lshl_b32 s%d, s%d, 1" % (ST, S_S))
    a("s_lshl_b32 s%d, s%d, 8" % (ST + 1, S_NI))
    a("s_lshl_b32 s%d, s%d, 4" % (ST + 2, S_W))
    for i in range(4):
        a("v_lshrrev_b32 v%d, 1, v%d" % (t0, VC))
        a("v_xor_b32 v%d, v%d, v%d" % (t0, t0, VQ))
        if i & 1:
            a("v_xor_b32 v%d, 4, v%d" % (t0, t0))
        a("v_add_u32 v%d, s%d, v%d" % (t0, ST, t0))
        a("v_and_b32 v%d, 7, v%d" % (t0, t0))
        a("v_and_b32 v%d, 1, v%d" % (t1, VC))
        a("v_lshl_add_u32 v%d, v%d, 1, v%d" % (t0, t0, t1))
        a("v_add_u32 v%d, s%d, v%d" % (t1, ST + 2, VQ))
        a("v_lshlrev_b32 v%d, 11, v%d" % (t1, t1))
        a("v_lshl_add_u32 v%d, v%d, 4, v%d" % (t0, t0, t1))
        a("v_add_u32 v%d, s%d, v%d" % (t0, ST + 1, t0))
        a("v_add_u32 v%d, 0x%x, v%d" % (VDG + i, i * (4 * 2048 - 1024), t0))
    a("s_add_u32 s%d, s%d, s%d" % (ST, S_W, S_S))
    a("s_and_b32 s%d, s%d, 3" % (ST, ST))
    a("s_lshl_b32 s%d, s%d, 5" % (ST, ST))
    a("s_lshl_b32 s%d, s%d, 7" % (ST + 1, S_NI))
    a("s_add_u32 s%d, s%d, s%d" % (ST, ST, ST + 1))
    a("v_lshrrev_b32 v%d, 3, v%d" % (t0, VLANE))
    a("v_add_u32 v%d, s%d, v%d" % (t0, ST, t0))
    a("v_lshlrev_b32 v%d, 11, v%d" % (t0, t0))
    a("v_and_b32 v%d, 7, v%d" % (t1, VLANE))
    a("v_xor_b32 v%d, v%d, v%d" % (t1, t1, VQ))
    a("v_xor_b32 v%d, 4, v%d" % (t2, t1))
    a("v_lshl_add_u32 v%d, v%d, 4, v%d" % (t1, t1, t0))
    a("v_lshl_add_u32 v%d, v%d, 4, v%d" % (t2, t2, t0))
    for i in range(4):
        a("v_add_u32 v%d, 0x%x, v%d" % (VDC + i, i * (8 * 2048 - 1024), t2 if i & 1 else t1))
    a("s_waitcnt lgkmcnt(0)")
    srd(a, sH, P_WS, WS_SIZE)
    srd(a, sWD, P_WD, 3584 * 1024 * 2)
    srd(a, sCR, P_CRE, 1024 * 1024 * 2)
    srd(a, sCI, P_CIM, 1024 * 1024 * 2)
    srd(a, sD, P_DBG, 256)
    srd(a, sO, P_OUT, 2048 * 1024 * 4)
    a("s_lshl_b32 s%d, s%d, 2" % (ST, S_MI))
    a("s_add_u32 s%d, s%d, s%d" % (ST, ST, S_W))
    a("s_mul_i32 s%d, s%d, 176" % (ST + 8, ST))
    a("s_mul_i32 s%d, s%d, 28" % (ST + 1, S_S))
    a("s_add_u32 s%d, s%d, s%d" % (ST + 1, ST + 1, ST + 8))
    a("s_lshl_b32 s%d, s%d, 12" % (S_OA, ST + 1))
    a("s_mul_i32 s%d, s%d, 0x%x" % (S_OB, S_S, 896 * 2048))

    def dma_list(t):
        slot = t % 4
        l = [("m0", "s_add_u32 m0, s%d, 0x%x" % (S_M0, slot * 16384))]
        for i in range(4):
            if t < 14:
                l.append(("dma", "buffer_load_dwordx4 v%d, s[%d:%d], s%d offen offset:%d lds" % (VDG + i, sWD, sWD + 3, S_OB, i * 1024)))
            else:
                sc = sCI if (t - 14) & 1 else sCR
                l.append(("dma", "buffer_load_dwordx4 v%d, s[%d:%d], s%d offen offset:%d lds" % (VDC + i, sc, sc + 3, S_OB, i * 1024)))
        if t < 13:
            l.append(("adv", "s_add_u32 s%d, s%d, 0x%x" % (S_OB, S_OB, 64 * 2048)))
        elif t == 13:
            l.append(("adv", "s_lshl_b32 s%d, s%d, 9" % (S_OB, S_S)))
        elif (t - 14) & 1:
            l.append(("adv", "s_add_u32 s%d, s%d, 128" % (S_OB, S_OB)))
        return l

    def a_list(t):
        l = []
        for k in range(8):
            l.append(("ld", "buffer_load_dwordx4 %s, v%d, s[%d:%d], s%d offen offset:%d" % (
                ar(ARING + (t % 4) * 32 + k * 4, 4), VA + (k >> 2), sH, sH + 3, S_OA, (k & 3) * 1024)))
        if t == 13:
            l.append(("adv", "s_lshl_b32 s%d, s%d, 4" % (ST, S_S)))
            l.append(("adv", "s_add_u32 s%d, s%d, s%d" % (ST, ST, ST + 8)))
            l.append(("adv", "s_add_u32 s%d, s%d, 112" % (ST, ST)))
            l.append(("adv", "s_lshl_b32 s%d, s%d, 12" % (S_OA, ST)))
        else:
            l.append(("adv", "s_add_u32 s%d, s%d, 8192" % (S_OA, S_OA)))
        return l

    for t in range(3):
        for kind, x in dma_list(t) + a_list(t):
            a(x)
            if kind == "m0":
                a("s_nop 0")

    a("s_lshl_b32 s%d, s%d, 8" % (ST, S_MI))
    a("s_lshl_b32 s%d, s%d, 6" % (ST + 1, S_W))
    a("s_add_u32 s%d, s%d, s%d" % (ST, ST, ST + 1))
    a("v_lshrrev_b32 v%d, 2, v%d" % (t0, VC))
    a("v_lshlrev_b32 v%d, 4, v%d" % (t0, t0))
    a("v_and_b32 v%d, 3, v%d" % (t1, VC))
    a("v_add3_u32 v%d, v%d, v%d, s%d" % (t0, t0, t1, ST))
    a("s_lshl_b32 s%d, s%d, 7" % (ST, S_NI))
    a("s_lshl_b32 s%d, s%d, 5" % (ST + 1, S_S))
    a("s_add_u32 s%d, s%d, s%d" % (ST, ST, ST + 1))
    a("v_lshl_add_u32 v%d, v%d, 2, s%d" % (t1, VQ, ST))
    a("v_lshlrev_b32 v%d, 2, v%d" % (t2, t0))
    a("s_mov_b32 s%d, 0x%x" % (ST, WS_G))
    for mt in range(4):
        a("buffer_load_dword v%d, v%d, s[%d:%d], s%d offen offset:%d" % (VG + mt, t2, sH, sH + 3, ST, mt * 16))
    srd(a, sP, P_DSK, 2048)
    a("v_lshlrev_b32 v%d, 1, v%d" % (t2, t1))
    for j in range(2):
        a("buffer_load_dwordx2 v[%d:%d], v%d, s[%d:%d], 0 offen offset:%d" % (VDS + 2 * j, VDS + 2 * j + 1, t2, sP, sP + 3, j * 32))
    srd(a, sP, P_X, 2048 * 1024 * 2)
    a("v_lshl_add_u32 v%d, v%d, 11, v%d" % (t2, t0, t2))
    for mt in range(4):
        a("v_add_u32 v%d, 0x%x, v%d" % (t3, mt * 4 * 2048, t2))
        for j in range(2):
            b = VXD + (j * 4 + mt) * 2
            a("buffer_load_dwordx2 v[%d:%d], v%d, s[%d:%d], 0 offen offset:%d" % (b, b + 1, t3, sP, sP + 3, j * 32))
        a("v_lshlrev_b32 v%d, 1, v%d" % (VOUT + mt, t3))
    NEP = 14

    a("v_lshrrev_b32 v%d, 2, v%d" % (t0, VLANE))
    a("v_and_b32 v%d, 7, v%d" % (t1, t0))
    a("v_lshlrev_b32 v%d, 8, v%d" % (t0, t0))
    a("v_and_b32 v%d, 3, v%d" % (t2, VLANE))
    a("v_lshl_add_u32 v%d, v%d, 3, v%d" % (t0, t2, t0))
    for j in range(8):
        a("v_xor_b32 v%d, %d, v%d" % (t2, j, t1))
        a("v_lshl_add_u32 v%d, v%d, 5, v%d" % (VWR + j, t2, t0))
    a("v_lshrrev_b32 v%d, 1, v%d" % (t0, VC))
    a("v_xor_b32 v%d, v%d, v%d" % (t0, t0, VQ))
    a("v_lshlrev_b32 v%d, 7, v%d" % (t1, VC))
    a("v_lshl_add_u32 v%d, v%d, 4, v%d" % (VCR, t0, t1))
    a("v_xor_b32 v%d, 64, v%d" % (VCR + 1, VCR))
    for i in range(128):
        a("v_mov_b32 v%d, 0" % i)
    for i in range(128):
        a("v_accvgpr_write_b32 a%d, 0" % i)
    a("s_waitcnt vmcnt(%d)" % (24 + NEP))
    a("s_barrier")

    lg = Lgkm(a)
    NU = 16
    def unit_info(t, u):
        s, j = divmod(u, 8)
        slot = t % 4
        pb = BPOOL + ((t * NU + u) % NB) * 4
        if t < 14:
            reads = ["ds_read_b64_tr_b16 %s, v%d offset:%d" % (vr(pb + 2 * h, 2), VWR + j, slot * 16384 + s * 8192 + h * 4096) for h in range(2)]
            acc = lambda mt: vr(ACC1 + (j * 4 + mt) * 4, 4)
        else:
            reads = ["ds_read_b128 %s, v%d offset:%d" % (vr(pb, 4), VCR + s, slot * 16384 + j * 2048)]
            acc = lambda mt: ar(ACC2 + (j * 4 + mt) * 4, 4)
        mf = ["v_mfma_f32_16x16x32_bf16 %s, %s, %s, %s" % (acc(mt), vr(pb, 4), ar(ARING + slot * 32 + (s * 4 + mt) * 4, 4), acc(mt)) for mt in range(4)]
        return reads, mf

    def body(t):
        first, last = t == 0, t == NST - 1
        nsl = NU * 4 + (TU * 4 if last else 0)
        fill = [[] for _ in range(nsl + 1)]
        rid = {}
        seq = []
        for u in range(LA):
            reads, _ = unit_info(t, u)
            seq += [(("B", u), r) for r in reads]
        k = 0
        for it in seq:
            u = it[0][1]
            prev = u - NB + NU
            minslot = 0
            if prev >= NU - TU:
                minslot = (prev - (NU - TU) + 1) * 4
            k = max(k, minslot)
            fill[k].append(("lds", it)); k += 1
        base = TU * 4
        for u in range(LA, NU):
            reads, _ = unit_info(t, u)
            for kk, r in enumerate(reads):
                pos = max(base + 4 * (u - LA) + 2 * kk, k)
                fill[pos].append(("lds", (("B", u), r)))
        if t + 3 < NST and not opt.get("k2_noload"):
            pos = 1
            for kind, x in dma_list(t + 3):
                fill[pos].append(("raw", x))
                pos += 2 if kind == "dma" else 1 if kind == "m0" else 0
            pos = base + 1
            for kind, x in a_list(t + 3):
                fill[pos].append(("raw", x))
                pos += opt.get("k2_astep", 4) if kind == "ld" else 0
        mfl = []
        if not first:
            for u in range(NU - TU, NU):
                _, mf = unit_info(t - 1, u)
                mfl += [(m, None) for m in mf]
        else:
            mfl += [(None, None)] * (TU * 4)
        for u in range(NU if last else NU - TU):
            _, mf = unit_info(t, u)
            mfl += [(m, [("B", u)]) for m in mf]
        for k, (m, deps) in enumerate(mfl):
            for kind, it in fill[k]:
                if kind == "lds":
                    key, x = it
                    rid.setdefault(key, []).append(lg.issue(x))
                else:
                    a(it)
                    if m is None and "m0" in it:
                        a("s_nop 0")
            if m is not None:
                if deps:
                    ids = []
                    for d in deps:
                        ids += rid[d]
                    lg.need(ids)
                if not opt.get("k2_nomfma"):
                    a(m)
                else:
                    a("s_nop 0")
        assert not fill[len(mfl)]
        if not last:
            n = 0
            for tt in (t + 2, t + 3):
                if tt < NST:
                    n += 12
            if t + 1 <= 2:
                n += NEP
            if opt.get("k2_noload"):
                n = 0
            a("s_waitcnt vmcnt(%d) lgkmcnt(0)" % n)
            lg.reset()
            a("s_barrier")

    for t in range(NST):
        body(t)
    a("s_nop 7")
    W1 = 128; W2 = 132
    E = 136
    for mt in range(4):
        a("v_sub_f32 v%d, 1.0, v%d" % (W1 + mt, VG + mt))
        a("v_cvt_pk_bf16_f32 v%d, v%d, v%d" % (W1 + mt, W1 + mt, W1 + mt))
        a("v_lshlrev_b32 v%d, 16, v%d" % (W1 + mt, W1 + mt))
        a("v_add_f32 v%d, v%d, v%d" % (W2 + mt, VG + mt, VG + mt))
    def combine(j, mt):
        b = (j * 4 + mt) * 4
        for r in range(4):
            a("v_accvgpr_read_b32 v%d, a%d" % (E + r, ACC2 + b + r))
        for r in range(4):
            a("v_mul_f32 v%d, v%d, v%d" % (ACC1 + b + r, W1 + mt, ACC1 + b + r))
        for r in range(4):
            a("v_fmac_f32 v%d, v%d, v%d" % (ACC1 + b + r, W2 + mt, E + r))
    for jj in range(1, 4):
        a("s_add_u32 s%d, s%d, %d" % (ST, S_S, jj))
        a("s_and_b32 s%d, s%d, 3" % (ST, ST))
        a("s_lshl_b32 s%d, s%d, 2" % (ST + 1, S_TILE))
        a("s_add_u32 s%d, s%d, s%d" % (ST, ST, ST + 1))
        a("s_mul_i32 s%d, s%d, 3" % (ST, ST))
        a("s_add_u32 s%d, s%d, %d" % (ST, ST, jj - 1))
        a("s_lshl_b32 s%d, s%d, 2" % (ST, ST))
        a("s_add_u32 s%d, s%d, s%d" % (ST, ST, S_W))
        a("s_lshl_b32 s%d, s%d, 13" % (ST, ST))
        a("s_add_u32 s%d, s%d, 0x%x" % (ST + 2 + jj, ST, WS_EX))
    for j in range(2, 8):
        for mt in range(4):
            combine(j, mt)
            b = ACC1 + (j * 4 + mt) * 4
            a("buffer_store_dwordx4 v[%d:%d], v%d, s[%d:%d], s%d offen offset:%d sc1" % (
                b, b + 3, VA + (j & 1), sH, sH + 3, ST + 2 + (j >> 1), mt * 1024))
    for j in range(2):
        for mt in range(4):
            combine(j, mt)
            b = ACC1 + (j * 4 + mt) * 4
            xb = VXD + (j * 4 + mt) * 2
            db = VDS + 2 * j
            for h in range(2):
                a("v_lshlrev_b32 v%d, 16, v%d" % (E, xb + h))
                a("v_and_b32 v%d, 0xffff0000, v%d" % (E + 1, xb + h))
                a("v_lshlrev_b32 v%d, 16, v%d" % (E + 2, db + h))
                a("v_and_b32 v%d, 0xffff0000, v%d" % (E + 3, db + h))
                a("v_mul_f32 v%d, v%d, v%d" % (E, E, E + 2))
                a("v_mul_f32 v%d, v%d, v%d" % (E + 1, E + 1, E + 3))
                a("v_cvt_pk_bf16_f32 v%d, v%d, v%d" % (E, E, E + 1))
                a("v_and_b32 v%d, 0xffff0000, v%d" % (E + 1, E))
                a("v_lshlrev_b32 v%d, 16, v%d" % (E, E))
                a("v_fmac_f32 v%d, v%d, v%d" % (b + 2 * h, VG + mt, E))
                a("v_fmac_f32 v%d, v%d, v%d" % (b + 2 * h + 1, VG + mt, E + 1))
    a("s_waitcnt vmcnt(0)")
    a("s_lshl_b32 s%d, s%d, 2" % (ST, S_S))
    a("s_add_u32 s%d, s%d, s%d" % (ST, ST, S_W))
    a("s_lshl_b32 s%d, 1, s%d" % (ST + 1, ST))
    a("s_lshl_b32 s%d, 0x1111, s%d" % (ST + 2, S_W))
    a("s_lshl_b32 s%d, s%d, 2" % (ST + 7, S_TILE))
    a("v_mov_b32 v%d, s%d" % (E, ST + 1))
    a("s_mov_b64 exec, 1")
    a("buffer_atomic_or v%d, off, s[%d:%d], s%d sc1" % (E, sD, sD + 3, ST + 7))
    a("s_mov_b64 exec, -1")
    a("s_lshl_b32 s%d, s%d, 2" % (ST, S_TILE))
    a("s_add_u32 s%d, s%d, s%d" % (ST, ST, S_S))
    a("s_mul_i32 s%d, s%d, 12" % (ST, ST))
    a("s_add_u32 s%d, s%d, s%d" % (ST, ST, S_W))
    a("s_lshl_b32 s%d, s%d, 13" % (ST, ST))
    a("s_add_u32 s%d, s%d, 0x%x" % (ST + 3, ST, WS_EX))
    a("s_add_u32 s%d, s%d, 0x8000" % (ST + 4, ST + 3))
    a("s_add_u32 s%d, s%d, 0x8000" % (ST + 5, ST + 4))
    a("s_mov_b32 s%d, 0x40000" % (ST + 9))
    a.lab("k2_poll")
    a("buffer_load_dword v%d, off, s[%d:%d], s%d sc1" % (E, sD, sD + 3, ST + 7))
    a("s_waitcnt vmcnt(0)")
    a("v_readfirstlane_b32 s%d, v%d" % (ST, E))
    a("s_and_b32 s%d, s%d, s%d" % (ST, ST, ST + 2))
    a("s_cmp_eq_u32 s%d, s%d" % (ST, ST + 2))
    a("s_cbranch_scc1 k2_ready")
    a("s_sleep 2")
    a("s_sub_u32 s%d, s%d, 1" % (ST + 9, ST + 9))
    a("s_cmp_lg_u32 s%d, 0" % (ST + 9))
    a("s_cbranch_scc1 k2_poll")
    a.lab("k2_ready")
    R = 32
    for sl in range(3):
        for k in range(8):
            b = R + (sl * 8 + k) * 4
            a("buffer_load_dwordx4 v[%d:%d], v%d, s[%d:%d], s%d offen offset:%d sc1" % (
                b, b + 3, VA + (k >> 2), sH, sH + 3, ST + 3 + sl, (k & 3) * 1024))
    for k in range(8):
        j, mt = k >> 2, k & 3
        b = ACC1 + k * 4
        a("s_waitcnt vmcnt(%d)" % (23 - (16 + k) + k))
        for sl in range(3):
            rb = R + (sl * 8 + k) * 4
            for h in range(2):
                a("v_pk_add_f32 v[%d:%d], v[%d:%d], v[%d:%d]" % (b + 2 * h, b + 2 * h + 1, b + 2 * h, b + 2 * h + 1, rb + 2 * h, rb + 2 * h + 1))
        a("buffer_store_dwordx4 v[%d:%d], v%d, s[%d:%d], 0 offen offset:%d" % (b, b + 3, VOUT + mt, sO, sO + 3, j * 64))
    a.lab("k2_done")
    a("s_endpgm")


def desc(name, nv, ns, acc):
    return """.amdhsa_kernel %s
  .amdhsa_next_free_vgpr %d
  .amdhsa_next_free_sgpr %d
  .amdhsa_accum_offset %d
  .amdhsa_group_segment_fixed_size 0
  .amdhsa_kernarg_size 136
  .amdhsa_user_sgpr_count 2
  .amdhsa_user_sgpr_kernarg_segment_ptr 1
  .amdhsa_system_sgpr_workgroup_id_x 1
.end_amdhsa_kernel
""" % (name, nv, ns, acc)

def build(opt):
    hdr = open("cdna_kernels/%s.s.ref" % NAME).read().split("; Override launch")[0]
    out = hdr
    out += "; @launch kernel=k1_kernel grid=(256,1,1) block=(256,1,1) lds=%d\n" % K1_LDS
    out += "; @launch kernel=k2_kernel grid=(256,1,1) block=(256,1,1) lds=%d\n" % opt.get("k2_lds", K2_LDS)
    out += '.amdgcn_target "amdgcn-amd-amdhsa--gfx950"\n.text\n'
    for nm, fn in (("k1_kernel", gen_k1), ("k2_kernel", gen_k2)):
        a = Asm()
        fn(a, opt)
        out += ".globl %s\n.p2align 8\n.type %s,@function\n" % (nm, nm) + a.text()
    out += '.section .rodata,"a"\n.p2align 6\n'
    out += desc("k1_kernel", 432, 96, 256)
    out += ".p2align 6\n"
    out += desc("k2_kernel", 512, 96, 256)
    return out

if __name__ == "__main__":
    opt = {}
    path = "cdna_kernels/%s.s" % NAME
    for x in sys.argv[1:]:
        if "=" in x:
            k, v = x.split("=", 1)
            try:
                v = int(v)
            except ValueError:
                pass
            opt[k] = v
        else:
            path = x
    open(path, "w").write(build(opt))
    print("wrote", path)
```

```python
import sys

NAME = "gated_mix__ssm_conv_s5__glu_gated_reglu__prompt"

class Asm:
    def __init__(self):
        self.l = []
        self.uid = 0
    def __call__(self, s):
        self.l.append(s if s.endswith(":") else "    " + s)
    def lab(self, s):
        self.l.append(s + ":")
    def newlab(self, p="L"):
        self.uid += 1
        return "%s_%d" % (p, self.uid)
    def text(self):
        return "\n".join(self.l) + "\n"

def vr(b, n=1, f="v"):
    return "%s%d" % (f, b) if n == 1 else "%s[%d:%d]" % (f, b, b + n - 1)
def ar(b, n=1):
    return vr(b, n, "a")
def sr(b, n=1):
    return vr(b, n, "s")

WS_H = 0
WS_G = 24 << 20
WS_AGG = 25 << 20
WS_EX = 32 << 20
WS_SIZE = 64 << 20

def kptr(i):
    return 36 + 2 * i
P_X, P_LRE, P_LIM, P_BRE, P_BIM, P_CRE, P_CIM, P_LDT, P_DSK, P_BX, P_WG, P_WU, P_WD, P_GW, P_OUT, P_DBG, P_WS = range(17)

def srd(a, d, p, nbytes):
    a("s_mov_b32 s%d, s%d" % (d, kptr(p)))
    a("s_mov_b32 s%d, s%d" % (d + 1, kptr(p) + 1))
    a("s_mov_b32 s%d, 0x%x" % (d + 2, nbytes))
    a("s_mov_b32 s%d, 0x20000" % (d + 3))

def load_kernargs(a):
    a("s_load_dwordx16 s[36:51], s[0:1], 0")
    a("s_load_dwordx16 s[52:67], s[0:1], 64")
    a("s_load_dwordx2 s[68:69], s[0:1], 128")

WS_STAMP = 60 << 20
class Stamps:
    def __init__(self, a, on, kid):
        self.a = a; self.on = on; self.kid = kid; self.n = 0
        self.r = [36, 42, 44, 52, 54, 56, 58, 60, 64, 66, 68, 38, 40]
    def start(self):
        if self.on:
            self.a("s_memtime s[90:91]")
            self.a("s_memrealtime s[92:93]")
    def stamp(self):
        if self.on:
            assert self.n < 11
            self.a("s_memtime s[%d:%d]" % (self.r[self.n], self.r[self.n] + 1))
            self.a("s_waitcnt lgkmcnt(0)")
            self.n += 1
    def dump(self, sH, S_W, vt):
        if not self.on:
            return
        a = self.a
        a("s_memtime s[%d:%d]" % (self.r[self.n], self.r[self.n] + 1))
        a("s_memrealtime s[94:95]")
        a("s_waitcnt lgkmcnt(0)")
        regs = [90, 92, 94] + self.r[:self.n + 1]
        a("v_mov_b32 v%d, 0" % vt)
        for i, r in enumerate(regs):
            a("v_writelane_b32 v%d, s%d, %d" % (vt, r, i))
        a("s_getreg_b32 s88, hwreg(HW_REG_XCC_ID)")
        a("v_writelane_b32 v%d, s88, 15" % vt)
        a("s_lshl_b32 s88, s2, 2")
        a("s_add_u32 s88, s88, s%d" % S_W)
        a("s_lshl_b32 s88, s88, 6")
        a("s_add_u32 s88, s88, 0x%x" % (WS_STAMP + self.kid * 65536))
        a("v_mbcnt_lo_u32_b32 v%d, -1, 0" % (vt + 1))
        a("v_lshlrev_b32 v%d, 2, v%d" % (vt + 1, vt + 1))
        a("s_mov_b64 exec, 0xffff")
        a("buffer_store_dword v%d, v%d, s[%d:%d], s88 offen" % (vt, vt + 1, sH, sH + 3))

class Lgkm:
    def __init__(self, a):
        self.a = a; self.n = 0; self.done = 0
    def issue(self, text):
        self.a(text); self.n += 1
        return self.n
    def need(self, ids):
        m = max(ids) if ids else 0
        if m > self.done:
            out = self.n - m
            assert out <= 15
            self.a("s_waitcnt lgkmcnt(%d)" % out)
            self.done = m
    def reset(self):
        self.done = self.n

def cmul_acc(a, dr, di, lr, li, sr_, si_, ur, ui, t0, t1):
    a("v_fma_f32 v%d, v%d, v%d, v%d" % (t0, lr, sr_, ur))
    a("v_fma_f32 v%d, v%d, v%d, v%d" % (t1, lr, si_, ui))
    return

STG = 69632
L_BR, L_BI, L_G, L_U, L_X = 0, 4096, 8192, 22528, 36864
L_T = 2 * STG
K1_LDS = L_T + 8192
WS_FLG = 26 << 20

def place_stream(fill, items, start, cap, limit=None):
    pos = start
    n = len(fill) - 1 if limit is None else limit
    k = 0
    while k < len(items):
        it = items[k]
        if isinstance(it, tuple) and it[0] == "at":
            pos = max(pos, it[1]); k += 1; continue
        if isinstance(it, tuple) and it[0] == "skip":
            pos += it[1]; k += 1; continue
        while pos < n and len(fill[pos]) >= cap:
            pos += 1
        if pos >= n:
            return pos, items[k:]
        if isinstance(it, list):
            for x in it:
                fill[pos].append(x if isinstance(x, tuple) else ("raw", x))
            pos += 1
        else:
            fill[pos].append(it if isinstance(it, tuple) else ("raw", it))
        k += 1
    return pos, []

def gen_k1(a, opt):
    LA = opt.get("k1_la", 6)
    NB = 8
    TU = 4
    PD = opt.get("k1_pd", 1)
    CAP = opt.get("k1_cap", 2)
    ACCS = 0; ACCG = 64
    TMP = 144
    VDX = 176; VDW = 184; VDB = 191
    VP = 193; VX = 197; VW = 201
    VPF = 203
    VLAM = 204
    VCOEF = 208
    VL16 = 212; VL256 = 216; VLSEG = 220; VL8 = 244
    VLANE = 224; VSEG = 225; VC = 226; VQ = 227
    SA = 228; S16 = 232; PP = 236
    VOOB = 248; VDUM = 249; VPB = 235
    PR = 250
    ACCU = 0; ACCG2 = 112; ABUF = 144; BPOOL = 176
    sX, sW, sB, sH, sD, sP, sPF = 4, 8, 12, 16, 20, 24, 96
    S_W, S_MI, S_NJ, S_OX, S_OW, S_CNT, S_OPF, S_IPF = 28, 29, 30, 31, 32, 33, 34, 35
    S_M0 = 70
    ST = 80
    def gacc(p, mt):
        return ("v", ACCG + (p * 4 + mt) * 4) if p < 5 else ("a", ACCG2 + ((p - 5) * 4 + mt) * 4)

    a.lab("k1_kernel")
    a("s_cmp_ge_u32 s2, 256")
    a("s_cbranch_scc1 k1_done")
    stp = Stamps(a, opt.get("stamps"), 0)
    stp.start()
    load_kernargs(a)
    T0 = TMP
    t0, t1, t2, t3 = T0 + 2, T0 + 3, T0 + 4, T0 + 5
    a("v_lshrrev_b32 v%d, 6, v0" % T0)
    a("v_and_b32 v%d, 63, v0" % VLANE)
    a("v_readfirstlane_b32 s%d, v%d" % (S_W, T0))
    a("s_and_b32 s%d, s2, 7" % ST)
    a("s_lshr_b32 s%d, s2, 3" % (ST + 1))
    a("s_and_b32 s%d, s%d, 7" % (S_MI, ST + 1))
    a("s_lshr_b32 s%d, s%d, 3" % (ST + 1, ST + 1))
    a("s_lshl_b32 s%d, s%d, 2" % (ST, ST))
    a("s_add_u32 s%d, s%d, s%d" % (S_NJ, ST, ST + 1))
    a("v_and_b32 v%d, 15, v%d" % (VC, VLANE))
    a("v_lshrrev_b32 v%d, 4, v%d" % (VQ, VLANE))
    a("s_lshl_b32 s%d, s%d, 2" % (ST, S_W))
    a("v_add_u32 v%d, s%d, v%d" % (VSEG, ST, VQ))
    a("v_sub_u32 v%d, 63, v%d" % (VOOB, VLANE))
    a("v_lshlrev_b32 v%d, 26, v%d" % (VOOB, VOOB))
    a("s_lshl_b32 s%d, s%d, 8" % (ST, S_MI))
    a("s_lshl_b32 s%d, s%d, 6" % (ST + 1, S_W))
    a("s_add_u32 s%d, s%d, s%d" % (ST, ST, ST + 1))
    a("v_lshrrev_b32 v%d, 5, v%d" % (t0, VLANE))
    a("v_lshlrev_b32 v%d, 4, v%d" % (t0, t0))
    a("v_and_b32 v%d, 8, v%d" % (t1, VLANE))
    a("v_add3_u32 v%d, v%d, v%d, s%d" % (t0, t0, t1, ST))
    a("v_bfe_u32 v%d, v%d, 4, 1" % (t1, VLANE))
    a("v_add_u32 v%d, v%d, v%d" % (t0, t0, t1))
    a("v_lshlrev_b32 v%d, 11, v%d" % (t0, t0))
    a("v_and_b32 v%d, 7, v%d" % (t1, VLANE))
    a("v_xor_b32 v%d, v%d, v%d" % (t1, t1, VQ))
    a("v_xor_b32 v%d, 4, v%d" % (t2, t1))
    a("v_lshl_add_u32 v%d, v%d, 4, v%d" % (t1, t1, t0))
    a("v_lshl_add_u32 v%d, v%d, 4, v%d" % (t2, t2, t0))
    for i in range(8):
        off = ((i & 1) * 32 + (i >> 1) * 2) * 2048 - (i & 3) * 1024
        assert off >= 0
        a("v_add_u32 v%d, 0x%x, v%d" % (VDX + i, off, t2 if i & 1 else t1))
    a("s_and_b32 s%d, s%d, 1" % (ST + 1, S_W))
    a("s_lshl_b32 s%d, s%d, 4" % (ST + 1, ST + 1))
    a("s_lshl_b32 s%d, s%d, 5" % (ST, S_NJ))
    a("s_add_u32 s%d, s%d, s%d" % (ST, ST, ST + 1))
    a("v_lshrrev_b32 v%d, 3, v%d" % (t0, VLANE))
    a("v_add_u32 v%d, s%d, v%d" % (t0, ST, t0))
    a("v_lshlrev_b32 v%d, 11, v%d" % (t0, t0))
    a("v_and_b32 v%d, 7, v%d" % (t1, VLANE))
    a("v_xor_b32 v%d, v%d, v%d" % (t1, t1, VQ))
    a("v_xor_b32 v%d, 4, v%d" % (t2, t1))
    a("v_lshl_add_u32 v%d, v%d, 4, v%d" % (VDB, t1, t0))
    a("v_lshl_add_u32 v%d, v%d, 4, v%d" % (t2, t2, t0))
    a("v_add_u32 v%d, 0x%x, v%d" % (VDB + 1, 8 * 2048 - 1024, t2))
    a("s_and_b32 s%d, s%d, 1" % (ST, S_W))
    a("s_mul_i32 s%d, s%d, 448" % (ST, ST))
    a("s_and_b32 s%d, s%d, 1" % (ST + 1, S_NJ))
    a("s_lshl_b32 s%d, s%d, 1" % (ST + 1, ST + 1))
    a("s_mul_i32 s%d, s%d, 224" % (ST + 2, S_NJ))
    a("s_movk_i32 s%d, 4682" % (ST + 3))
    a("s_movk_i32 s%d, 7168" % (ST + 5))
    for i in range(7):
        a("v_add_u32 v%d, s%d, v%d" % (t0, ST, VLANE))
        if i:
            a("v_add_u32 v%d, %d, v%d" % (t0, 64 * i, t0))
        a("v_mul_u32_u24 v%d, s%d, v%d" % (t1, ST + 3, t0))
        a("v_lshrrev_b32 v%d, 16, v%d" % (t1, t1))
        a("v_mul_u32_u24 v%d, 14, v%d" % (t2, t1))
        a("v_sub_u32 v%d, v%d, v%d" % (t0, t0, t2))
        a("v_add_u32 v%d, s%d, v%d" % (t0, ST + 1, t0))
        a("v_subrev_u32 v%d, 14, v%d" % (t2, t0))
        a("v_min_u32 v%d, v%d, v%d" % (t0, t0, t2))
        a("v_and_b32 v%d, 0x33, v%d" % (t2, t1))
        a("v_and_b32 v%d, 4, v%d" % (t3, t1))
        a("v_lshl_or_b32 v%d, v%d, 1, v%d" % (t2, t3, t2))
        a("v_and_b32 v%d, 8, v%d" % (t3, t1))
        a("v_lshrrev_b32 v%d, 1, v%d" % (t3, t3))
        a("v_or_b32 v%d, v%d, v%d" % (t2, t2, t3))
        a("v_mul_u32_u24 v%d, s%d, v%d" % (t2, ST + 5, t2))
        a("v_lshl_add_u32 v%d, v%d, 4, v%d" % (t2, t0, t2))
        a("v_add_u32 v%d, s%d, v%d" % (t2, ST + 2, t2))
        a("v_subrev_u32 v%d, 0x%x, v%d" % (VDW + i, (i & 3) * 1024, t2))
    for par in range(2):
        a("s_lshl_b32 s%d, s%d, 13" % (ST, S_W))
        a("s_add_u32 s%d, s%d, 0x%x" % (S_M0 + 0 + par, ST, L_X + par * STG))
        a("s_add_u32 s%d, s%d, 0x%x" % (S_M0 + 2 + par, ST, L_X + par * STG + 4096))
        a("s_mul_i32 s%d, s%d, 7168" % (ST, S_W))
        a("s_add_u32 s%d, s%d, 0x%x" % (S_M0 + 4 + par, ST, L_G + par * STG))
        a("s_add_u32 s%d, s%d, 0x%x" % (S_M0 + 6 + par, ST, L_G + par * STG + 4096))
        a("s_lshl_b32 s%d, s%d, 11" % (ST, S_W))
        a("s_add_u32 s%d, s%d, 0x%x" % (S_M0 + 8 + par, ST, par * STG))
    a("s_mov_b32 s%d, 0" % S_OX)
    a("s_mov_b32 s%d, 0" % S_OW)
    VS0, VS1 = T0 + 8, T0 + 9
    a("s_lshl_b32 s%d, s%d, 6" % (ST, S_NJ))
    a("v_lshl_add_u32 v%d, v%d, 1, s%d" % (VS0, VC, ST))
    a("v_lshlrev_b32 v%d, 5, v%d" % (VS1, VLANE))
    a("s_lshl_b32 s%d, s2, 3" % ST)
    a("s_lshl_b32 s%d, s%d, 1" % (ST + 1, S_W))
    a("s_add_u32 s%d, s%d, s%d" % (ST + 4, ST, ST + 1))
    a("s_lshl_b32 s%d, s%d, 11" % (ST + 6, ST + 4))
    a("s_lshr_b32 s%d, s2, 3" % ST)
    a("s_and_b32 s%d, s2, 7" % (ST + 1))
    a("s_lshl_b32 s%d, s%d, 6" % (ST + 2, ST))
    a("v_add_u32 v%d, s%d, v%d" % (t0, ST + 2, VLANE))
    a("v_lshlrev_b32 v%d, 11, v%d" % (t0, t0))
    a("s_mul_i32 s%d, s%d, 14336" % (ST + 2, ST))
    a("s_mul_i32 s%d, s%d, 896" % (ST + 3, ST + 1))
    a("s_add_u32 s%d, s%d, s%d" % (ST + 2, ST + 2, ST + 3))
    a("v_cmp_lt_u32 vcc, 6, v%d" % VLANE)
    a("v_mov_b32 v%d, 0x%x" % (t2, 7168 - 7 * 128))
    a("s_nop 0")
    a("v_cndmask_b32 v%d, 0, v%d, vcc" % (t1, t2))
    a("v_lshl_add_u32 v%d, v%d, 7, v%d" % (t1, VLANE, t1))
    a("v_add_u32 v%d, s%d, v%d" % (t1, ST + 2, t1))
    a("v_bfrev_b32 v%d, -2" % t2)
    a("v_cmp_lt_u32 vcc, 13, v%d" % VLANE)
    a("s_nop 1")
    a("v_cndmask_b32 v%d, v%d, v%d, vcc" % (t1, t1, t2))
    a("s_mul_i32 s%d, s2, %d" % (ST + 2, 224 * 128))
    a("v_lshl_add_u32 v%d, v%d, 7, s%d" % (t3, VLANE, ST + 2))
    a("v_cmp_lt_u32 vcc, 14, v%d" % VLANE)
    a("s_nop 1")
    a("v_cndmask_b32 v%d, v%d, v%d, vcc" % (t3, t3, t2))
    a("s_cmp_eq_u32 s%d, 0" % S_W)
    a("s_cselect_b64 vcc, -1, 0")
    a("v_cndmask_b32 v%d, v%d, v%d, vcc" % (t1, t1, t0))
    a("s_mov_b32 s%d, 0x%x" % (S_IPF, 64 * 7168))
    a("s_cselect_b32 s%d, 128, s%d" % (S_IPF, S_IPF))
    a("s_cmp_eq_u32 s%d, 3" % S_W)
    a("s_cselect_b64 vcc, -1, 0")
    a("v_cndmask_b32 v%d, v%d, v%d, vcc" % (VPF, t1, t3))
    VPF0 = T0 + 12
    a("v_cndmask_b32 v%d, v%d, v%d, vcc" % (VPF0, t1, t2))
    a("s_cselect_b32 s%d, 0, s%d" % (ST + 9, S_IPF))
    a("s_cselect_b32 s%d, %d, s%d" % (S_IPF, 15 * 128, S_IPF))
    a("s_mov_b32 s%d, 0" % S_OPF)
    a("s_lshl_b32 s%d, s%d, 7" % (ST + 1, ST + 1))
    a("s_lshl_b32 s%d, s%d, 2" % (ST, ST))
    a("s_add_u32 s%d, s%d, s%d" % (ST, ST, ST + 1))
    a("s_and_b32 s%d, s%d, 1" % (ST + 1, S_W))
    a("s_lshl_b32 s%d, s%d, 1" % (ST + 2, ST + 1))
    a("s_add_u32 s%d, s%d, s%d" % (ST, ST, ST + 2))
    a("v_add_u32 v%d, s%d, v%d" % (t0, ST, VLANE))
    a("v_lshlrev_b32 v%d, 11, v%d" % (t0, t0))
    a("v_cmp_lt_u32 vcc, 1, v%d" % VLANE)
    a("s_nop 1")
    a("v_cndmask_b32 v%d, v%d, v%d, vcc" % (VPB, t0, t2))
    VC1 = T0 + 11
    a("s_lshl_b32 s%d, s2, 13" % ST)
    a("s_lshl_b32 s%d, s%d, 12" % (ST + 1, ST + 1))
    a("s_add_u32 s%d, s%d, s%d" % (ST, ST, ST + 1))
    a("v_lshl_add_u32 v%d, v%d, 7, s%d" % (t0, VLANE, ST))
    a("v_cmp_lt_u32 vcc, 31, v%d" % VLANE)
    a("s_nop 1")
    a("v_cndmask_b32 v%d, v%d, v%d, vcc" % (VC1, t0, t2))

    a("s_waitcnt lgkmcnt(0)")
    srd(a, sX, P_X, 2048 * 1024 * 2)
    a("s_cmp_lt_u32 s%d, 2" % S_W)
    a("s_cselect_b32 s%d, s%d, s%d" % (sW, kptr(P_WG), kptr(P_WU)))
    a("s_cselect_b32 s%d, s%d, s%d" % (sW + 1, kptr(P_WG) + 1, kptr(P_WU) + 1))
    a("s_mov_b32 s%d, 0x%x" % (sW + 2, 1024 * 3584 * 2))
    a("s_mov_b32 s%d, 0x20000" % (sW + 3))
    a("s_cselect_b32 s%d, s%d, s%d" % (sB, kptr(P_BRE), kptr(P_BIM)))
    a("s_cselect_b32 s%d, s%d, s%d" % (sB + 1, kptr(P_BRE) + 1, kptr(P_BIM) + 1))
    a("s_mov_b32 s%d, 0x%x" % (sB + 2, 1024 * 1024 * 2))
    a("s_mov_b32 s%d, 0x20000" % (sB + 3))

    def dma_list(par, pf=True):
        l = []
        if pf and PD:
            l += pf_list()
        for i in range(7):
            if i % 4 == 0:
                l.append(("m0", "s_mov_b32 m0, s%d" % (S_M0 + 4 + (i // 4) * 2 + par)))
            l.append(("dma", "buffer_load_dwordx4 v%d, s[%d:%d], s%d offen offset:%d lds" % (VDW + i, sW, sW + 3, S_OW, (i & 3) * 1024)))
        l.append(("m0", "s_mov_b32 m0, s%d" % (S_M0 + 8 + par)))
        for i in range(2):
            l.append(("dma", "buffer_load_dwordx4 v%d, s[%d:%d], s%d offen offset:%d lds" % (VDB + i, sB, sB + 3, S_OX, i * 1024)))
        for i in range(8):
            if i % 4 == 0:
                l.append(("m0", "s_mov_b32 m0, s%d" % (S_M0 + (i // 4) * 2 + par)))
            l.append(("dma", "buffer_load_dwordx4 v%d, s[%d:%d], s%d offen offset:%d lds" % (VDX + i, sX, sX + 3, S_OX, (i & 3) * 1024)))
        if not opt.get("noadv"):
            l.append(("adv", "s_add_u32 s%d, s%d, 128" % (S_OX, S_OX)))
            l.append(("adv", "s_add_u32 s%d, s%d, 0x%x" % (S_OW, S_OW, 64 * 7168)))
        return l
    def pf_list():
        return [("dma", "buffer_load_dword v%d, v%d, s[%d:%d], s%d offen" % (VDUM, VPF, sPF, sPF + 3, S_OPF)),
                ("adv", "s_add_u32 s%d, s%d, s%d" % (S_OPF, S_OPF, S_IPF)),
                ("dma", "buffer_load_dword v%d, v%d, s[%d:%d], s%d offen offset:%d" % (VDUM, VPB, sB, sB + 3, S_OX, 128 * PD))]

    a("s_cmp_eq_u32 s%d, 0" % S_W)
    a("s_cselect_b32 s%d, s%d, s%d" % (sPF, sX, sW))
    a("s_cselect_b32 s%d, s%d, s%d" % (sPF + 1, sX + 1, sW + 1))
    a("s_cselect_b32 s%d, s%d, s%d" % (sPF + 2, sX + 2, sW + 2))
    a("s_cmp_eq_u32 s%d, 3" % S_W)
    a("s_cselect_b32 s%d, s%d, s%d" % (sPF, kptr(P_WD), sPF))
    a("s_cselect_b32 s%d, s%d, s%d" % (sPF + 1, kptr(P_WD) + 1, sPF + 1))
    a("s_mov_b32 s%d, 0x20000" % (sPF + 3))
    def pf0():
        a("buffer_load_dword v%d, v%d, s[%d:%d], s%d offen" % (VDUM, VPF0, sPF, sPF + 3, S_OPF))
        a("s_add_u32 s%d, s%d, s%d" % (S_OPF, S_OPF, ST + 9))
    if opt.get("k1_pf0", 1):
        pf0()
    else:
        a("s_add_u32 s%d, s%d, s%d" % (S_OPF, S_OPF, ST + 9))
    for kind, t in dma_list(0, pf=False):
        a(t)
        if kind == "m0":
            a("s_nop 0")
    NSM = 0
    for k in range(PD):
        pf0()
        a("buffer_load_dword v%d, v%d, s[%d:%d], 0 offen offset:%d" % (VDUM, VPB, sB, sB + 3, 128 * (k + 1)))
        NSM += 2
    GX, GW = TMP, TMP + 16
    VS0n, VS1n, VC1n = SA, SA + 1, SA + 2
    a("v_mov_b32 v%d, v%d" % (VS0n, VS0))
    a("v_mov_b32 v%d, v%d" % (VS1n, VS1))
    a("v_mov_b32 v%d, v%d" % (VC1n, VC1))
    srd(a, sH, P_WS, WS_SIZE)
    srd(a, sD, P_DBG, 256)
    def srd_l(d, p, nbytes):
        return ["s_mov_b32 s%d, s%d" % (d, kptr(p)), "s_mov_b32 s%d, s%d" % (d + 1, kptr(p) + 1),
                "s_mov_b32 s%d, 0x%x" % (d + 2, nbytes), "s_mov_b32 s%d, 0x20000" % (d + 3)]
    def small_loads():
        l = []
        l.append(srd_l(sP, P_GW, 2048))
        l.append([("vm", "buffer_load_dwordx4 v[%d:%d], v%d, s[%d:%d], 0 offen" % (GW, GW + 3, VS1n, sP, sP + 3))])
        l.append([("vm", "buffer_load_dwordx4 v[%d:%d], v%d, s[%d:%d], 0 offen offset:16" % (GW + 4, GW + 7, VS1n, sP, sP + 3))])
        for r in range(2):
            for h in range(2):
                l.append([("vm", "buffer_load_dwordx4 v[%d:%d], v%d, s[%d:%d], s%d offen offset:%d" % (
                    GX + r * 8 + h * 4, GX + r * 8 + h * 4 + 3, VS1n, sX, sX + 3, ST + 6, r * 2048 + h * 16))])
        l.append(("vmmark", None))
        for k, p in enumerate((P_LRE, P_LIM, P_LDT)):
            l.append(srd_l(sP, p, 2048))
            l.append([("vm", "buffer_load_ushort v%d, v%d, s[%d:%d], 0 offen" % (PR + 2 * k, VS0n, sP, sP + 3))])
            l.append([("vm", "buffer_load_ushort v%d, v%d, s[%d:%d], 0 offen offset:32" % (PR + 2 * k + 1, VS0n, sP, sP + 3))])
        l.append([("vm", "buffer_store_dwordx4 v[%d:%d], v%d, s[%d:%d], s%d offen" % (PP, PP + 3, VOOB, sH, sH + 3, ST + 7))])
        l.append(["s_cmp_lt_u32 s%d, 2" % S_W,
                  "s_cselect_b32 s%d, s%d, s%d" % (sP, kptr(P_CRE), kptr(P_CIM)),
                  "s_cselect_b32 s%d, s%d, s%d" % (sP + 1, kptr(P_CRE) + 1, kptr(P_CIM) + 1),
                  "s_mov_b32 s%d, 0x%x" % (sP + 2, 1024 * 1024 * 2)])
        return l
    def late_loads():
        l = []
        if PD:
            l.append([("vm", "buffer_load_dword v%d, v%d, s[%d:%d], 0 offen" % (VDUM, VC1n, sP, sP + 3))])
        if opt.get("k1_tlb", 1):
            l += ["s_lshl_b32 s%d, s%d, 2" % (ST, S_MI), "s_add_u32 s%d, s%d, s%d" % (ST, ST, S_W),
                  "s_mul_i32 s%d, s%d, 0x%x" % (ST, ST, 176 * 4096),
                  "v_min_u32 v%d, 43, v%d" % (VC1n, VLANE),
                  "v_lshlrev_b32 v%d, 14, v%d" % (VC1n, VC1n),
                  [("vm", "buffer_load_dword v%d, v%d, s[%d:%d], s%d offen" % (VDUM, VC1n, sH, sH + 3, ST))],
                  "s_mov_b32 s%d, 0x%x" % (ST, WS_AGG),
                  [("vm", "buffer_load_dword v%d, off, s[%d:%d], s%d" % (VDUM, sH, sH + 3, ST))],
                  [("vm", "buffer_load_dword v%d, off, s[%d:%d], 0 sc1" % (VDUM, sD, sD + 3))]]
        return l

    t0, t1 = TMP + 24, TMP + 25
    a("v_lshrrev_b32 v%d, 1, v%d" % (t0, VC))
    a("v_xor_b32 v%d, v%d, v%d" % (t0, t0, VQ))
    a("v_lshlrev_b32 v%d, 7, v%d" % (t1, VC))
    a("v_lshl_add_u32 v%d, v%d, 4, v%d" % (VP, t0, t1))
    a("v_xor_b32 v%d, 64, v%d" % (VP + 2, VP))
    a("v_add_u32 v%d, 0x%x, v%d" % (VP + 1, STG, VP))
    a("v_add_u32 v%d, 0x%x, v%d" % (VP + 3, STG, VP + 2))
    a("s_lshl_b32 s%d, s%d, 13" % (ST, S_W))
    a("s_add_u32 s%d, s%d, 0x%x" % (ST, ST, L_X))
    for k in range(4):
        a("v_add_u32 v%d, s%d, v%d" % (VX + k, ST, VP + k))
    a("v_lshrrev_b32 v%d, 5, v%d" % (t0, VLANE))
    a("v_lshlrev_b32 v%d, 4, v%d" % (t0, t0))
    a("v_bfe_u32 v%d, v%d, 2, 3" % (t1, VLANE))
    a("v_add_u32 v%d, v%d, v%d" % (t0, t0, t1))
    a("v_mul_u32_u24 v%d, 0xe0, v%d" % (t0, t0))
    a("v_and_b32 v%d, 3, v%d" % (t1, VLANE))
    a("v_lshl_add_u32 v%d, v%d, 3, v%d" % (VW, t1, t0))
    a("v_add_u32 v%d, 0x%x, v%d" % (VW + 1, STG, VW))
    for k in range(4):
        a("v_mov_b32 v%d, 0" % (PP + k))
    a("v_lshlrev_b32 v%d, 4, v0" % t0)
    a("v_add_u32 v%d, 0x%x, v%d" % (t0, L_T, t0))
    a("ds_write_b128 v%d, v[%d:%d]" % (t0, PP, PP + 3))
    a("s_lshr_b32 s%d, s2, 2" % ST)
    a("s_lshl_b32 s%d, s%d, 7" % (ST, ST))
    a("s_and_b32 s%d, s2, 3" % (ST + 1))
    a("s_lshl_b32 s%d, s%d, 4" % (ST + 1, ST + 1))
    a("s_add_u32 s%d, s%d, s%d" % (ST, ST, ST + 1))
    a("s_add_u32 s%d, s%d, 0x%x" % (ST + 7, ST, WS_FLG))
    stp.stamp()
    a("s_waitcnt vmcnt(%d) lgkmcnt(0)" % NSM)
    a("s_barrier")
    stp.stamp()

    def g_stream():
        l = []
        A0 = TMP + 30
        u0, u1, u2, u3 = TMP + 24, TMP + 25, TMP + 26, TMP + 27
        l.append("v_mov_b32 v%d, 0" % A0)
        l.append("v_mov_b32 v%d, 0" % (A0 + 1))
        for d in range(8):
            l.append("v_lshlrev_b32 v%d, 16, v%d" % (u0, GW + d))
            l.append("v_and_b32 v%d, 0xffff0000, v%d" % (u1, GW + d))
            for r in range(2):
                x = GX + r * 8 + d
                l.append("v_lshlrev_b32 v%d, 16, v%d" % (u2, x))
                l.append("v_and_b32 v%d, 0xffff0000, v%d" % (u3, x))
                l.append("v_pk_mul_f32 v[%d:%d], v[%d:%d], v[%d:%d]" % (u2, u3, u2, u3, u0, u1))
                l.append("v_cvt_pk_bf16_f32 v%d, v%d, v%d" % (u2, u2, u3))
                l.append("v_lshlrev_b32 v%d, 16, v%d" % (u3, u2))
                l.append("v_and_b32 v%d, 0xffff0000, v%d" % (u2, u2))
                l.append("v_add_f32 v%d, v%d, v%d" % (A0 + r, A0 + r, u3))
                l.append("v_add_f32 v%d, v%d, v%d" % (A0 + r, A0 + r, u2))
        for dpp in ("row_shr:1 row_mask:0xf bank_mask:0xf bound_ctrl:0", "row_shr:2 row_mask:0xf bank_mask:0xf bound_ctrl:0",
                    "row_shr:4 row_mask:0xf bank_mask:0xf bound_ctrl:0", "row_shr:8 row_mask:0xf bank_mask:0xf bound_ctrl:0",
                    "row_bcast:15 row_mask:0xa bank_mask:0xf", "row_bcast:31 row_mask:0xc bank_mask:0xf"):
            l.append(["s_nop 1", "v_add_f32_dpp v%d, v%d, v%d %s" % (A0, A0, A0, dpp),
                      "v_add_f32_dpp v%d, v%d, v%d %s" % (A0 + 1, A0 + 1, A0 + 1, dpp)])
        l += ["v_cvt_pk_bf16_f32 v%d, v%d, v%d" % (u0, A0, A0 + 1),
              "v_lshlrev_b32 v%d, 16, v%d" % (A0, u0), "v_and_b32 v%d, 0xffff0000, v%d" % (A0 + 1, u0),
              "v_mul_f32 v%d, 0xbfb8aa3b, v%d" % (A0, A0), "v_mul_f32 v%d, 0xbfb8aa3b, v%d" % (A0 + 1, A0 + 1),
              "v_exp_f32 v%d, v%d" % (A0, A0), ["v_exp_f32 v%d, v%d" % (A0 + 1, A0 + 1), "s_nop 0"],
              "v_add_f32 v%d, 1.0, v%d" % (A0, A0), "v_add_f32 v%d, 1.0, v%d" % (A0 + 1, A0 + 1),
              "v_rcp_f32 v%d, v%d" % (A0, A0), ["v_rcp_f32 v%d, v%d" % (A0 + 1, A0 + 1), "s_nop 0"],
              "v_cvt_pk_bf16_f32 v%d, v%d, v%d" % (u0, A0, A0 + 1),
              "v_lshlrev_b32 v%d, 16, v%d" % (A0, u0), "v_and_b32 v%d, 0xffff0000, v%d" % (A0 + 1, u0),
              "s_lshl_b32 s%d, s%d, 2" % (ST, ST + 4), "s_add_u32 s%d, s%d, 0x%x" % (ST, ST, WS_G),
              ("vm", "buffer_store_dwordx2 v[%d:%d], v%d, s[%d:%d], s%d offen" % (A0, A0 + 1, VOOB, sH, sH + 3, ST))]
        return l

    def param_stream():
        l = []
        for k in range(6):
            l.append("v_lshlrev_b32 v%d, 16, v%d" % (PR + k, PR + k))
        for cg in range(2):
            lre, lim, ldt = PR + cg, PR + 2 + cg, PR + 4 + cg
            x0, x1, x2, x3, pr, pi = [TMP + 8 * cg + k for k in range(6)]
            LR, LI = VLAM + 2 * cg, VLAM + 2 * cg + 1
            l += ["v_mul_f32 v%d, 0x3fb8aa3b, v%d" % (x0, ldt),
                  ["v_exp_f32 v%d, v%d" % (x0, x0), "s_nop 0"],
                  "v_cvt_pk_bf16_f32 v%d, v%d, v%d" % (x0, x0, x0),
                  "v_lshlrev_b32 v%d, 16, v%d" % (x0, x0),
                  "v_mul_f32 v%d, v%d, v%d" % (x1, x0, lre),
                  "v_mul_f32 v%d, v%d, v%d" % (x2, x0, lim),
                  "v_mul_f32 v%d, 0x3fb8aa3b, v%d" % (x1, x1),
                  "v_exp_f32 v%d, v%d" % (x1, x1),
                  "v_mul_f32 v%d, 0.15915494, v%d" % (x2, x2),
                  "v_fract_f32 v%d, v%d" % (x2, x2),
                  "v_cos_f32 v%d, v%d" % (x3, x2),
                  ["v_sin_f32 v%d, v%d" % (x2, x2), "s_nop 0"],
                  "v_mul_f32 v%d, v%d, v%d" % (LR, x1, x3),
                  "v_mul_f32 v%d, v%d, v%d" % (LI, x1, x2),
                  "v_add_f32 v%d, -1.0, v%d" % (x0, LR),
                  "v_mul_f32 v%d, v%d, v%d" % (x1, lre, lre),
                  "v_fmac_f32 v%d, v%d, v%d" % (x1, lim, lim),
                  "v_rcp_f32 v%d, v%d" % (x1, x1),
                  "v_mul_f32 v%d, v%d, v%d" % (x2, x0, lre),
                  "v_fmac_f32 v%d, v%d, v%d" % (x2, LI, lim),
                  "v_mul_f32 v%d, v%d, v%d" % (x3, LI, lre),
                  "v_fma_f32 v%d, -v%d, v%d, v%d" % (x3, x0, lim, x3),
                  "v_mul_f32 v%d, v%d, v%d" % (VCOEF + 2 * cg, x2, x1),
                  "v_mul_f32 v%d, v%d, v%d" % (VCOEF + 2 * cg + 1, x3, x1)]
            def square(sr_, si_, dr, di):
                return ["v_mul_f32 v%d, v%d, v%d" % (x0, si_, si_),
                        "v_mul_f32 v%d, v%d, v%d" % (x1, sr_, si_),
                        "v_fma_f32 v%d, v%d, v%d, -v%d" % (dr, sr_, sr_, x0),
                        "v_add_f32 v%d, v%d, v%d" % (di, x1, x1)]
            l += square(LR, LI, pr, pi) + square(pr, pi, pr, pi) + square(pr, pi, VL8 + cg, VL8 + 2 + cg)
            l += square(VL8 + cg, VL8 + 2 + cg, VL16 + cg, VL16 + 2 + cg)
            lr_, li_ = VLSEG + cg, VLSEG + 2 + cg
            l += ["v_mov_b32 v%d, 1.0" % lr_, "v_mov_b32 v%d, 0" % li_]
            cr, ci = VL16 + cg, VL16 + 2 + cg
            for b in range(4):
                l += ["v_and_b32 v%d, %d, v%d" % (x2, 1 << b, VSEG),
                      "v_cmp_ne_u32 vcc, 0, v%d" % x2,
                      "v_mul_f32 v%d, v%d, v%d" % (x2, lr_, cr),
                      "v_fma_f32 v%d, -v%d, v%d, v%d" % (x2, li_, ci, x2),
                      "v_mul_f32 v%d, v%d, v%d" % (x3, lr_, ci),
                      "v_fmac_f32 v%d, v%d, v%d" % (x3, li_, cr),
                      "v_cndmask_b32 v%d, v%d, v%d, vcc" % (lr_, lr_, x2),
                      "v_cndmask_b32 v%d, v%d, v%d, vcc" % (li_, li_, x3)]
                if b < 3:
                    l += square(cr, ci, pr, pi)
                else:
                    l += square(cr, ci, VL256 + cg, VL256 + 2 + cg)
                cr, ci = pr, pi
        return l

    def pkf(d, s0, s1, s2, sel=None, neg=False):
        t = "v_pk_fma_f32 v[%d:%d], v[%d:%d], v[%d:%d], v[%d:%d]" % (d, d + 1, s0, s0 + 1, s1, s1 + 1, s2, s2 + 1)
        if sel is not None:
            t += " op_sel:[%d,0,0] op_sel_hi:[%d,1,1]" % (sel, sel)
        if neg:
            t += " neg_lo:[1,0,0] neg_hi:[1,0,0]"
        return t
    def quad_cmul_add(D, L, X, U, t):
        return [pkf(t, L, X, U), pkf(t + 2, L, X + 2, U + 2), pkf(D, L + 2, X + 2, t, neg=True), pkf(D + 2, L + 2, X, t + 2)]

    def ureg(cg, isim, k):
        return ACCS + 32 * cg + 16 * isim + 2 * k

    VTA = VDX
    TCH = [VDX + 4, TMP]
    def agg_stream():
        l = []
        W = [[TMP + 8 * cg + 2 * k for k in range(4)] for cg in range(2)]
        cur = [[ureg(cg, 0, 0), ureg(cg, 1, 0)] for cg in range(2)]
        for k in range(1, 8):
            for cg in range(2):
                L = VLAM + 2 * cg
                sr_, si_ = cur[cg]
                free = [r for r in W[cg] if r not in (sr_, si_)]
                tr, ti = free[0], free[1]
                l.append(pkf(tr, L, sr_, ureg(cg, 0, k), sel=0))
                l.append(pkf(ti, L, si_, ureg(cg, 1, k), sel=0))
                cur[cg] = [sr_, si_, tr, ti]
            for cg in range(2):
                L = VLAM + 2 * cg
                sr_, si_, tr, ti = cur[cg]
                l.append(pkf(tr, L, si_, tr, sel=1, neg=True))
                l.append(pkf(ti, L, sr_, ti, sel=1))
                cur[cg] = [tr, ti]
        SB = TMP + 16
        for cg in range(2):
            sr_, si_ = cur[cg]
            l += ["v_mov_b32 v%d, v%d" % (SA + cg, sr_), "v_mov_b32 v%d, v%d" % (SA + 2 + cg, si_),
                  "v_mov_b32 v%d, v%d" % (SB + cg, sr_ + 1), "v_mov_b32 v%d, v%d" % (SB + 2 + cg, si_ + 1)]
        l += quad_cmul_add(S16, VL8, SA, SB, TMP + 20)
        l += ["v_lshlrev_b32 v%d, 4, v%d" % (VTA, VC),
              "v_lshl_add_u32 v%d, v%d, 8, v%d" % (VTA, VSEG, VTA),
              "v_add_u32 v%d, 0x%x, v%d" % (VTA, L_T, VTA)]
        l.append(("lds", (("TW",), "ds_write_b128 v%d, v[%d:%d] offset:%d" % (VTA, S16, S16 + 3, 15 * 256))))
        l.append(("skip", 3))
        l.append([("need", [("TW",)]), "s_barrier"])
        def rd(j):
            b = TCH[(j // 3) % 2] + 4 * (j % 3)
            return ("lds", (("T", j), "ds_read_b128 v[%d:%d], v%d offset:%d" % (b, b + 3, VTA, j * 256)))
        for j in range(6):
            l.append(rd(j))
        l.append(("skip", 4))
        cp = None
        for j in range(15):
            b = TCH[(j // 3) % 2] + 4 * (j % 3)
            l.append(("need", [("T", j)]))
            if j == 0:
                cp = b
                continue
            d = PP + 4 * (j % 2)
            l += quad_cmul_add(d, VL16, cp, b, TMP + 20)
            cp = d
            if j % 3 == 2 and j + 4 < 15 + 0:
                for jj in range(j + 4, min(j + 7, 15)):
                    l.append(rd(jj))
        assert cp == PP
        l += quad_cmul_add(PP + 4, VL16, PP, S16, TMP + 20)
        l += ["s_lshl_b32 s%d, s%d, 11" % (ST + 6, S_NJ),
              "s_add_u32 s%d, s%d, 0x%x" % (ST + 6, ST + 6, WS_AGG),
              "s_lshl_b32 s%d, s%d, 8" % (ST, S_MI),
              "s_add_u32 s%d, s%d, s%d" % (ST, ST, ST + 6),
              "v_sub_u32 v%d, 15, v%d" % (VTA + 1, VSEG),
              "v_lshlrev_b32 v%d, 26, v%d" % (VTA + 1, VTA + 1),
              "v_lshlrev_b32 v%d, 4, v%d" % (VTA + 2, VC),
              "v_add_u32 v%d, v%d, v%d" % (VTA + 1, VTA + 1, VTA + 2),
              ("vm", "buffer_store_dwordx4 v[%d:%d], v%d, s[%d:%d], s%d offen sc1" % (PP + 4, PP + 7, VTA + 1, sH, sH + 3, ST))]
        return l

    VL16B = VTA + 3
    hst = opt.get("h_store_flags", "")
    def glu_setup():
        return ["s_lshl_b32 s%d, s%d, 2" % (ST, S_MI),
                "s_add_u32 s%d, s%d, s%d" % (ST, ST, S_W),
                "s_mul_i32 s%d, s%d, 176" % (ST + 8, ST),
                "s_and_b32 s%d, s%d, 1" % (ST + 1, S_NJ),
                "s_mul_i32 s%d, s%d, 7" % (ST + 2, S_NJ),
                "s_add_u32 s%d, s%d, s%d" % (ST + 3, ST + 2, ST + 1),
                "s_lshr_b32 s%d, s%d, 1" % (ST + 3, ST + 3),
                "s_add_u32 s%d, s%d, s%d" % (ST + 3, ST + 3, ST + 8),
                "s_lshl_b32 s%d, s%d, 12" % (ST + 3, ST + 3),
                "s_mul_i32 s%d, s%d, 7" % (ST + 5, ST + 1),
                "s_add_u32 s%d, s%d, 6" % (ST + 2, ST + 2),
                "s_sub_u32 s%d, s%d, s%d" % (ST + 2, ST + 2, ST + 5),
                "s_lshr_b32 s%d, s%d, 1" % (ST + 2, ST + 2),
                "s_add_u32 s%d, s%d, s%d" % (ST + 2, ST + 2, ST + 8),
                "s_lshl_b32 s%d, s%d, 12" % (ST + 2, ST + 2),
                "s_lshl_b32 s%d, s%d, 3" % (ST + 1, ST + 1),
                "s_add_u32 s%d, s%d, s%d" % (ST + 2, ST + 2, ST + 1),
                "v_lshlrev_b32 v%d, 4, v%d" % (VL16B, VLANE)]
    ecnt = [0]
    def glu_tile(p, mt, dst):
        l = []
        f, g = gacc(p, mt)
        u = ACCU + (p * 4 + mt) * 4
        e = TMP + 24 + 4 * (ecnt[0] % 2); ecnt[0] += 1
        if f == "a":
            g2 = ACCG + 16 + mt * 4
            for r in range(4):
                l.append("v_accvgpr_read_b32 v%d, a%d" % (g2 + r, g + r))
            g = g2
        for r in range(4):
            l.append("v_accvgpr_read_b32 v%d, a%d" % (e + r, u + r))
        if opt.get("fast_glu", 1):
            for r in range(4):
                l.append("v_max_f32 v%d, 0, v%d" % (g + r, g + r))
        else:
            for h in range(2):
                l.append("v_cvt_pk_bf16_f32 v%d, v%d, v%d" % (g + 2 * h, g + 2 * h, g + 2 * h + 1))
                l.append("v_cvt_pk_bf16_f32 v%d, v%d, v%d" % (e + 2 * h, e + 2 * h, e + 2 * h + 1))
            for h in range(2):
                l.append("v_pk_max_i16 v%d, v%d, 0" % (g + 2 * h, g + 2 * h))
            for h in range(2):
                l.append("v_and_b32 v%d, 0xffff0000, v%d" % (g + 2 * h + 1, g + 2 * h))
                l.append("v_lshlrev_b32 v%d, 16, v%d" % (g + 2 * h, g + 2 * h))
                l.append("v_and_b32 v%d, 0xffff0000, v%d" % (e + 2 * h + 1, e + 2 * h))
                l.append("v_lshlrev_b32 v%d, 16, v%d" % (e + 2 * h, e + 2 * h))
        for h in range(2):
            l.append("v_pk_mul_f32 v[%d:%d], v[%d:%d], v[%d:%d]" % (g + 2 * h, g + 2 * h + 1, g + 2 * h, g + 2 * h + 1, e + 2 * h, e + 2 * h + 1))
        for h in range(2):
            l.append("v_cvt_pk_bf16_f32 v%d, v%d, v%d" % (dst + h, g + 2 * h, g + 2 * h + 1))
        return l
    def glu_pair(pp):
        l = []
        for mt in range(4):
            d = ACCG + (2 * pp * 4 + mt) * 4
            l += glu_tile(2 * pp, mt, d)
            l += glu_tile(2 * pp + 1, mt, d + 2)
            l.append(("vm", "buffer_store_dwordx4 v[%d:%d], v%d, s[%d:%d], s%d offen offset:%d %s" % (d, d + 3, VL16B, sH, sH + 3, ST + 3, mt * 1024, hst)))
        l.append("s_add_u32 s%d, s%d, 4096" % (ST + 3, ST + 3))
        return l
    def glu_single():
        l = []
        for mt in range(4):
            d = TMP + 2 * mt
            l += glu_tile(6, mt, d)
            l.append(("vm", "buffer_store_dwordx2 v[%d:%d], v%d, s[%d:%d], s%d offen offset:%d %s" % (d, d + 1, VL16B, sH, sH + 3, ST + 2, mt * 1024, hst)))
        return l

    lg = Lgkm(a)
    NU = 36
    STD = [(s, j) for s in range(2) for j in range(18)]
    LAST = [(0, j) for j in range(4)] + [(1, j) for j in range(4)]
    for p in range(7):
        LAST += [(0, 4 + 2 * p), (0, 5 + 2 * p), (1, 4 + 2 * p), (1, 5 + 2 * p)]

    def unit_info(par, pos, sj, zero=False):
        s, j = sj
        pb = BPOOL + ((par * NU + pos) % NB) * 4
        if j < 4:
            cg, isim = j >> 1, j & 1
            reads = ["ds_read_b128 %s, v%d offset:%d" % (ar(pb, 4), VP + s * 2 + par, isim * 4096 + cg * 2048)]
            acc = lambda mt: vr(ACCS + (j * 4 + mt) * 4, 4)
            mf = ["v_mfma_f32_16x16x32_bf16 %s, %s, %s, %s" % (acc(mt), ar(ABUF + (s * 4 + mt) * 4, 4), ar(pb, 4),
                                                               "0" if zero else acc(mt)) for mt in range(4)]
        else:
            p, isup = (j - 4) >> 1, (j - 4) & 1
            reads = ["ds_read_b64_tr_b16 %s, v%d offset:%d" % (ar(pb + 2 * h, 2), VW + par, L_G + isup * 14336 + (32 * s + 8 * h) * 224 + p * 32)
                     for h in range(2)]
            if isup:
                acc = lambda mt: ar(ACCU + (p * 4 + mt) * 4, 4)
            else:
                acc = lambda mt: vr(gacc(p, mt)[1], 4, gacc(p, mt)[0])
            mf = ["v_mfma_f32_16x16x32_bf16 %s, %s, %s, %s" % (acc(mt), ar(pb, 4), ar(ABUF + (s * 4 + mt) * 4, 4),
                                                               "0" if zero else acc(mt)) for mt in range(4)]
        return reads, mf

    def a_reads(par, s):
        return ["ds_read_b128 %s, v%d offset:%d" % (ar(ABUF + (s * 4 + mt) * 4, 4), VX + s * 2 + par, mt * 2048) for mt in range(4)]

    vmc = [0]
    vmn = [1]
    def emit_item(kind, it, rid):
        if kind in ("raw", "vm") and it.startswith("buffer_"):
            vmn[0] += 1
        if kind == "vmmark":
            vmn[0] = 0
        elif kind == "vmwait":
            a("s_waitcnt vmcnt(%d)" % vmn[0])
        elif kind == "lds":
            key, t = it
            if opt.get("k1_nolds") and key[0] in "AB":
                rid.setdefault(key, []).append(0)
            else:
                rid.setdefault(key, []).append(lg.issue(t))
        elif kind == "need":
            ids = []
            for d in it:
                ids += rid[d]
            lg.need(ids)
        elif kind == "vm":
            a(it); vmc[0] += 1
        else:
            a(it)

    def body(par, first=False, last=False, stream=None, sstart=0, cap=None):
        order = LAST if last else STD
        nslots = NU * 4 + (TU * 4 if last else 0)
        fill = [[] for _ in range(nslots + 1)]
        rid = {}
        seq = [(("A", 0, mt), r) for mt, r in enumerate(a_reads(par, 0))]
        for u in range(LA):
            reads, _ = unit_info(par, u, order[u])
            seq += [(("B", u), r) for r in reads]
        assert len(seq) <= TU * 4
        for k, it in enumerate(seq):
            fill[k].append(("lds", it))
        base = TU * 4
        for u in range(LA, NU):
            reads, _ = unit_info(par, u, order[u])
            for k, r in enumerate(reads):
                fill[base + 4 * (u - LA) + 2 * k].append(("lds", (("B", u), r)))
        for mt, r in enumerate(a_reads(par, 1)):
            fill[base + (1 + 2 * mt if last else 4 * (2 + 2 * mt) + 1)].append(("lds", (("A", 1, mt), r)))
        npf = 0
        if not last and not opt.get("k1_nodma"):
            pos = opt.get("k1_dma0", 1)
            step = opt.get("k1_dmastep", 4)
            for kind, t in dma_list(par ^ 1):
                fill[pos].append(("raw", t))
                if kind == "dma":
                    pos += step
                elif kind == "m0":
                    pos += 1
                    fill[pos - 1][-1] = ("m0", t)
            npf = 1 if PD else 0
            dma_end = pos
        left = []
        vm0 = vmc[0]
        if stream:
            _, left = place_stream(fill, stream, sstart, cap or CAP, nslots)
            assert last or not left, len(left)
        mfl = []
        if not first:
            for u in range(NU - TU, NU):
                _, mf = unit_info(par ^ 1, u, STD[u])
                mfl += [(m, None) for m in mf]
        else:
            mfl += [(None, None)] * (TU * 4)
        for u in range(NU if last else NU - TU):
            s, j = order[u]
            _, mf = unit_info(par, u, order[u], zero=(first and s == 0))
            mfl += [(m, [("B", u), ("A", s, mt)]) for mt, m in enumerate(mf)]
        vm_after_pf = 0
        seen_pf = False
        for k, (m, deps) in enumerate(mfl):
            for kind, it in fill[k]:
                emit_item(kind, it, rid)
                if kind == "m0" and m is None:
                    a("s_nop 0")
                if kind == "raw" and it.startswith("buffer_load_dwordx4") and " lds" in it:
                    vm_after_pf = 0
                elif kind == "vm" or (kind == "raw" and it.startswith("buffer_")):
                    vm_after_pf += 1
            if m is not None:
                if deps:
                    ids = []
                    for d in deps:
                        ids += rid[d]
                    lg.need(ids)
                if not opt.get("k1_nomfma"):
                    a(m)
                elif fill[k]:
                    a("s_nop 0")
        assert not fill[len(mfl)]
        if not last:
            a("s_waitcnt vmcnt(%d) lgkmcnt(0)" % vm_after_pf)
            lg.reset()
            a("s_barrier")
        return left, rid

    body(0, first=True, stream=small_loads(), sstart=opt.get("k1_sl0", 92), cap=3)
    stp.stamp()
    gs = [("vmwait", None)] + g_stream()
    body(1, stream=gs, sstart=opt.get("k1_gstart", 30), cap=3)
    stp.stamp()
    a("s_mov_b32 s%d, 6" % S_CNT)
    a(".p2align 6")
    a.lab("k1_loop")
    body(0)
    body(1)
    a("s_sub_u32 s%d, s%d, 1" % (S_CNT, S_CNT))
    a("s_cmp_lg_u32 s%d, 0" % S_CNT)
    a("s_cbranch_scc1 k1_loop")
    stp.stamp()
    body(0, stream=param_stream() + [("at", 100)] + late_loads(), sstart=0, cap=3)
    stp.stamp()
    base = TU * 4
    es = glu_setup() + [("at", base + 32 + 8)] + agg_stream()
    vm_agg = None
    es += [("mark_agg",)]
    es_glu = [("at", base + 64 + 8)] + glu_pair(0) + [("flag",)] + [("at", base + 96 + 8)] + glu_pair(1) + \
             [("at", base + 128 + 8)] + glu_pair(2) + [("at", base + 144 + 8)] + glu_single()
    def flag_code(nafter):
        return ["s_cmp_lg_u32 s%d, 3" % S_W,
                "s_cbranch_scc1 k1_noflag",
                "s_waitcnt vmcnt(%d)" % nafter,
                "s_lshl_b32 s%d, s%d, 3" % (ST, S_NJ),
                "s_add_u32 s%d, s%d, s%d" % (ST, ST, S_MI),
                "v_mov_b32 v%d, 1" % (VTA + 1),
                "buffer_store_byte v%d, v%d, s[%d:%d], s%d offen sc1" % (VTA + 1, VOOB, sD, sD + 3, ST),
                "k1_noflag:"]
    full = []
    for it in es + es_glu:
        if it == ("mark_agg",):
            continue
        if it == ("flag",):
            full.append(flag_code(4))
        else:
            full.append(it)
    left, rid = body(1, last=True, stream=full, sstart=0)
    stp.stamp()
    a("s_nop 7")
    for it in left:
        if isinstance(it, tuple) and it[0] in ("at", "skip"):
            continue
        for x in (it if isinstance(it, list) else [it]):
            if isinstance(x, tuple):
                emit_item(x[0], x[1], rid)
            else:
                a(x)
    stp.stamp()
    CI = TMP + 8; TT = TMP + 20
    for k in range(4):
        a("v_mov_b32 v%d, 0" % (CI + k))
    a("s_cmp_eq_u32 s%d, 0" % S_MI)
    a("s_cbranch_scc1 k1_nocarry")
    a("s_lshl_b32 s%d, s%d, 3" % (ST + 7, S_NJ))
    a("s_lshl_b32 s%d, s%d, 3" % (ST, S_MI))
    a("s_mov_b32 s%d, 0x01010101" % (ST + 2))
    a("s_mov_b32 s%d, 0x01010101" % (ST + 3))
    a("s_lshl_b64 s[%d:%d], 1, s%d" % (ST + 4, ST + 5, ST))
    a("s_sub_u32 s%d, s%d, 1" % (ST + 4, ST + 4))
    a("s_subb_u32 s%d, s%d, 0" % (ST + 5, ST + 5))
    a("s_and_b64 s[%d:%d], s[%d:%d], s[%d:%d]" % (ST + 2, ST + 3, ST + 2, ST + 3, ST + 4, ST + 5))
    a("s_mov_b32 s%d, 0x40000" % (ST + 9))
    a.lab("k1_poll")
    a("buffer_load_dwordx2 v[%d:%d], off, s[%d:%d], s%d sc1" % (TT, TT + 1, sD, sD + 3, ST + 7))
    a("s_waitcnt vmcnt(0)")
    a("v_readfirstlane_b32 s%d, v%d" % (ST + 4, TT))
    a("v_readfirstlane_b32 s%d, v%d" % (ST + 5, TT + 1))
    a("s_and_b64 s[%d:%d], s[%d:%d], s[%d:%d]" % (ST + 4, ST + 5, ST + 4, ST + 5, ST + 2, ST + 3))
    a("s_cmp_eq_u64 s[%d:%d], s[%d:%d]" % (ST + 4, ST + 5, ST + 2, ST + 3))
    a("s_cbranch_scc1 k1_ready")
    a("s_sleep 1")
    a("s_sub_u32 s%d, s%d, 1" % (ST + 9, ST + 9))
    a("s_cmp_lg_u32 s%d, 0" % (ST + 9))
    a("s_cbranch_scc1 k1_poll")
    a.lab("k1_ready")
    LB = [ACCG + 48 + 4 * m for m in range(4)] + [ACCG + 16 + 4 * m for m in range(3)]
    for m in range(7):
        a("buffer_load_dwordx4 v[%d:%d], v%d, s[%d:%d], s%d offen offset:%d sc1" % (LB[m], LB[m] + 3, VTA + 2, sH, sH + 3, ST + 6, m * 256))
    a("s_waitcnt vmcnt(0)")
    for m in range(7):
        for x in quad_cmul_add(CI + 4, VL256, CI, LB[m], TT):
            a(x)
        a("v_pk_mov_b32 v[%d:%d], v[%d:%d], v[%d:%d] op_sel:[0,1]" % (CI, CI + 1, CI + 4, CI + 5, CI + 4, CI + 5))
        a("v_pk_mov_b32 v[%d:%d], v[%d:%d], v[%d:%d] op_sel:[0,1]" % (CI + 2, CI + 3, CI + 6, CI + 7, CI + 6, CI + 7))
        if m < 6:
            a("s_cmp_eq_u32 s%d, %d" % (S_MI, m + 1))
            a("s_cbranch_scc1 k1_nocarry")
    a.lab("k1_nocarry")
    stp.stamp()
    HA, HB = S16, PP + 4
    for x in quad_cmul_add(HA, VLSEG, CI, PP, TT) + quad_cmul_add(HB, VL8, HA, SA, TT):
        a(x)
    W = [[TMP + 8 * cg + 2 * k for k in range(4)] for cg in range(2)]
    cur = []
    for cg in range(2):
        sr_, si_ = W[cg][0], W[cg][1]
        a("v_mov_b32 v%d, v%d" % (sr_, HA + cg)); a("v_mov_b32 v%d, v%d" % (sr_ + 1, HB + cg))
        a("v_mov_b32 v%d, v%d" % (si_, HA + 2 + cg)); a("v_mov_b32 v%d, v%d" % (si_ + 1, HB + 2 + cg))
        cur.append([sr_, si_])
    Q = [TMP + 16 + 4 * cg for cg in range(2)]
    ZERO = TMP + 24
    a("v_mov_b32 v%d, 0" % ZERO); a("v_mov_b32 v%d, 0" % (ZERO + 1))
    for k in range(8):
        nxt = []
        for cg in range(2):
            L = VLAM + 2 * cg
            sr_, si_ = cur[cg]
            free = [r for r in W[cg] if r not in (sr_, si_)]
            tr, ti = free
            a(pkf(tr, L, sr_, ureg(cg, 0, k), sel=0))
            a(pkf(ti, L, si_, ureg(cg, 1, k), sel=0))
            nxt.append((sr_, si_, tr, ti))
        for cg in range(2):
            L = VLAM + 2 * cg
            sr_, si_, tr, ti = nxt[cg]
            a(pkf(tr, L, si_, tr, sel=1, neg=True))
            a(pkf(ti, L, sr_, ti, sel=1))
            cur[cg] = [tr, ti]
        for cg in range(2):
            C = VCOEF + 2 * cg
            sr_, si_ = cur[cg]
            a(pkf(Q[cg], C, sr_, ZERO, sel=0))
            a(pkf(Q[cg] + 2, C, si_, ZERO, sel=0, neg=True))
        for cg in range(2):
            C = VCOEF + 2 * cg
            sr_, si_ = cur[cg]
            a(pkf(ureg(cg, 0, k), C, si_, Q[cg], sel=1, neg=True))
            a(pkf(ureg(cg, 1, k), C, sr_, Q[cg] + 2, sel=1, neg=True))
    vw_, vr_ = TMP + 26, TMP + 27
    a("s_mul_i32 s%d, s%d, 8704" % (ST, S_W))
    a("v_mul_u32_u24 v%d, 0x88, v%d" % (vw_, VC))
    a("v_lshl_add_u32 v%d, v%d, 3, v%d" % (vw_, VQ, vw_))
    a("v_add_u32 v%d, s%d, v%d" % (vw_, ST, vw_))
    a("v_bfe_u32 v%d, v%d, 2, 2" % (vr_, VLANE))
    a("v_lshl_add_u32 v%d, v%d, 3, v%d" % (vr_, VQ, vr_))
    a("v_mul_u32_u24 v%d, 0x88, v%d" % (vr_, vr_))
    a("v_and_b32 v%d, 3, v%d" % (TT, VLANE))
    a("v_lshl_add_u32 v%d, v%d, 3, v%d" % (vr_, TT, vr_))
    a("v_add_u32 v%d, s%d, v%d" % (vr_, ST, vr_))
    for cg in range(2):
        for isim in range(2):
            for mt in range(4):
                b = ACCS + 32 * cg + 16 * isim + 4 * mt
                a("v_cvt_pk_bf16_f32 v%d, v%d, v%d" % (b, b, b + 1))
                a("v_cvt_pk_bf16_f32 v%d, v%d, v%d" % (b + 1, b + 2, b + 3))
                a("ds_write_b64 v%d, v[%d:%d] offset:%d" % (vw_, b, b + 1, isim * 4352 + cg * 2176 + mt * 32))
    a("s_waitcnt lgkmcnt(0)")
    O = [ACCG + 48 + 4 * k for k in range(4)] + [ACCG + 16 + 4 * k for k in range(4)]
    for isim in range(2):
        for mt in range(4):
            for h in range(2):
                o = O[isim * 4 + mt] + 2 * h
                a("ds_read_b64_tr_b16 v[%d:%d], v%d offset:%d" % (o, o + 1, vr_, isim * 4352 + h * 544 + mt * 32))
    a("s_lshr_b32 s%d, s%d, 1" % (ST, S_NJ))
    a("s_lshl_b32 s%d, s%d, 2" % (ST, ST))
    a("s_and_b32 s%d, s%d, 1" % (ST + 1, S_NJ))
    a("s_add_u32 s%d, s%d, s%d" % (ST, ST, ST + 1))
    a("s_add_u32 s%d, s%d, 112" % (ST, ST))
    a("s_add_u32 s%d, s%d, s%d" % (ST, ST, ST + 8))
    a("s_lshl_b32 s%d, s%d, 12" % (ST, ST))
    a("s_add_u32 s%d, s%d, 8192" % (ST + 1, ST))
    a("s_waitcnt lgkmcnt(0)")
    for isim in range(2):
        for mt in range(4):
            o = O[isim * 4 + mt]
            a("buffer_store_dwordx4 v[%d:%d], v%d, s[%d:%d], s%d offen offset:%d %s" % (o, o + 3, VL16B, sH, sH + 3, ST + isim, mt * 1024, hst))
    if opt.get("stamps"):
        stp.stamp()
        a("s_waitcnt vmcnt(0)")
    stp.dump(sH, S_W, 250)
    a.lab("k1_done")
    a("s_endpgm")


K2_LDS = 65536

def gen_k2(a, opt):
    LA = opt.get("k2_la", 5)
    NB = 8
    TU = opt.get("k2_tu", 3)
    ACC1 = 0
    BPOOL = 128
    VWR = 160
    VCR = 168
    VDG = 170
    VDC = 174
    VA = 178
    VLANE = 180; VC = 181; VQ = 182
    VG = 184
    VXD = 188
    VDS = 204
    VOUT = 208
    T0 = 212
    ACC2 = 0
    ARING = 128
    sH, sWD, sCR, sCI, sD, sO, sP = 4, 8, 12, 16, 20, 24, 72
    S_W, S_MI, S_NI, S_S, S_OA, S_OB = 28, 29, 30, 31, 32, 33
    S_M0 = 34
    S_TILE = 35
    ST = 80
    NST = 22

    a.lab("k2_kernel")
    a("s_cmp_ge_u32 s2, 256")
    a("s_cbranch_scc1 k2_done")
    stp = Stamps(a, opt.get("stamps"), 1)
    stp.start()
    load_kernargs(a)
    a("v_lshrrev_b32 v%d, 6, v0" % T0)
    a("v_and_b32 v%d, 63, v0" % VLANE)
    a("v_readfirstlane_b32 s%d, v%d" % (S_W, T0))
    a("s_and_b32 s%d, s2, 7" % ST)
    a("s_lshr_b32 s%d, s%d, 1" % (S_S, ST))
    a("s_and_b32 s%d, s%d, 1" % (ST, ST))
    a("s_lshl_b32 s%d, s%d, 5" % (ST, ST))
    a("s_lshr_b32 s%d, s2, 3" % (ST + 1))
    a("s_add_u32 s%d, s%d, s%d" % (S_TILE, ST, ST + 1))
    a("s_lshr_b32 s%d, s%d, 3" % (S_MI, S_TILE))
    a("s_and_b32 s%d, s%d, 7" % (S_NI, S_TILE))
    a("v_and_b32 v%d, 15, v%d" % (VC, VLANE))
    a("v_lshrrev_b32 v%d, 4, v%d" % (VQ, VLANE))
    a("s_lshl_b32 s%d, s%d, 12" % (S_M0, S_W))
    a("v_lshlrev_b32 v%d, 4, v%d" % (VA, VLANE))
    a("v_add_u32 v%d, 0x1000, v%d" % (VA + 1, VA))
    t0, t1, t2, t3 = T0, T0 + 1, T0 + 2, T0 + 3
    a("s_lshl_b32 s%d, s%d, 1" % (ST, S_S))
    a("s_lshl_b32 s%d, s%d, 8" % (ST + 1, S_NI))
    a("s_lshl_b32 s%d, s%d, 4" % (ST + 2, S_W))
    for i in range(4):
        a("v_lshrrev_b32 v%d, 1, v%d" % (t0, VC))
        a("v_xor_b32 v%d, v%d, v%d" % (t0, t0, VQ))
        if i & 1:
            a("v_xor_b32 v%d, 4, v%d" % (t0, t0))
        a("v_add_u32 v%d, s%d, v%d" % (t0, ST, t0))
        a("v_and_b32 v%d, 7, v%d" % (t0, t0))
        a("v_and_b32 v%d, 1, v%d" % (t1, VC))
        a("v_lshl_add_u32 v%d, v%d, 1, v%d" % (t0, t0, t1))
        a("v_add_u32 v%d, s%d, v%d" % (t1, ST + 2, VQ))
        a("v_lshlrev_b32 v%d, 11, v%d" % (t1, t1))
        a("v_lshl_add_u32 v%d, v%d, 4, v%d" % (t0, t0, t1))
        a("v_add_u32 v%d, s%d, v%d" % (t0, ST + 1, t0))
        a("v_add_u32 v%d, 0x%x, v%d" % (VDG + i, i * (4 * 2048 - 1024), t0))
    a("s_add_u32 s%d, s%d, s%d" % (ST, S_W, S_S))
    a("s_and_b32 s%d, s%d, 3" % (ST, ST))
    a("s_lshl_b32 s%d, s%d, 5" % (ST, ST))
    a("s_lshl_b32 s%d, s%d, 7" % (ST + 1, S_NI))
    a("s_add_u32 s%d, s%d, s%d" % (ST, ST, ST + 1))
    a("v_lshrrev_b32 v%d, 3, v%d" % (t0, VLANE))
    a("v_add_u32 v%d, s%d, v%d" % (t0, ST, t0))
    a("v_lshlrev_b32 v%d, 11, v%d" % (t0, t0))
    a("v_and_b32 v%d, 7, v%d" % (t1, VLANE))
    a("v_xor_b32 v%d, v%d, v%d" % (t1, t1, VQ))
    a("v_xor_b32 v%d, 4, v%d" % (t2, t1))
    a("v_lshl_add_u32 v%d, v%d, 4, v%d" % (t1, t1, t0))
    a("v_lshl_add_u32 v%d, v%d, 4, v%d" % (t2, t2, t0))
    for i in range(4):
        a("v_add_u32 v%d, 0x%x, v%d" % (VDC + i, i * (8 * 2048 - 1024), t2 if i & 1 else t1))
    a("s_waitcnt lgkmcnt(0)")
    srd(a, sH, P_WS, WS_SIZE)
    srd(a, sWD, P_WD, 3584 * 1024 * 2)
    srd(a, sCR, P_CRE, 1024 * 1024 * 2)
    srd(a, sCI, P_CIM, 1024 * 1024 * 2)
    srd(a, sD, P_DBG, 256)
    srd(a, sO, P_OUT, 2048 * 1024 * 4)
    a("s_lshl_b32 s%d, s%d, 2" % (ST, S_MI))
    a("s_add_u32 s%d, s%d, s%d" % (ST, ST, S_W))
    a("s_mul_i32 s%d, s%d, 176" % (ST + 8, ST))
    a("s_mul_i32 s%d, s%d, 28" % (ST + 1, S_S))
    a("s_add_u32 s%d, s%d, s%d" % (ST + 1, ST + 1, ST + 8))
    a("s_lshl_b32 s%d, s%d, 12" % (S_OA, ST + 1))
    a("s_mul_i32 s%d, s%d, 0x%x" % (S_OB, S_S, 896 * 2048))

    def dma_list(t):
        slot = t % 4
        l = [("m0", "s_add_u32 m0, s%d, 0x%x" % (S_M0, slot * 16384))]
        for i in range(4):
            if t < 14:
                l.append(("dma", "buffer_load_dwordx4 v%d, s[%d:%d], s%d offen offset:%d lds" % (VDG + i, sWD, sWD + 3, S_OB, i * 1024)))
            else:
                sc = sCI if (t - 14) & 1 else sCR
                l.append(("dma", "buffer_load_dwordx4 v%d, s[%d:%d], s%d offen offset:%d lds" % (VDC + i, sc, sc + 3, S_OB, i * 1024)))
        if opt.get("noadv") and t != 13:
            pass
        elif t < 13:
            l.append(("adv", "s_add_u32 s%d, s%d, 0x%x" % (S_OB, S_OB, 64 * 2048)))
        elif t == 13:
            l.append(("adv", "s_lshl_b32 s%d, s%d, 9" % (S_OB, S_S)))
        elif (t - 14) & 1:
            l.append(("adv", "s_add_u32 s%d, s%d, 128" % (S_OB, S_OB)))
        return l

    def a_list(t):
        l = []
        for k in range(8):
            l.append(("ld", "buffer_load_dwordx4 %s, v%d, s[%d:%d], s%d offen offset:%d" % (
                ar(ARING + (t % 4) * 32 + k * 4, 4), VA + (k >> 2), sH, sH + 3, S_OA, (k & 3) * 1024)))
        if t == 13:
            l.append(("adv", "s_lshl_b32 s%d, s%d, 4" % (ST, S_S)))
            l.append(("adv", "s_add_u32 s%d, s%d, s%d" % (ST, ST, ST + 8)))
            l.append(("adv", "s_add_u32 s%d, s%d, 112" % (ST, ST)))
            l.append(("adv", "s_lshl_b32 s%d, s%d, 12" % (S_OA, ST)))
        elif not opt.get("noadv"):
            l.append(("adv", "s_add_u32 s%d, s%d, 8192" % (S_OA, S_OA)))
        return l

    for t in range(3):
        for kind, x in dma_list(t) + a_list(t):
            a(x)
            if kind == "m0":
                a("s_nop 0")

    a("s_lshl_b32 s%d, s%d, 8" % (ST, S_MI))
    a("s_lshl_b32 s%d, s%d, 6" % (ST + 1, S_W))
    a("s_add_u32 s%d, s%d, s%d" % (ST, ST, ST + 1))
    a("v_lshrrev_b32 v%d, 2, v%d" % (t0, VC))
    a("v_lshlrev_b32 v%d, 4, v%d" % (t0, t0))
    a("v_bfe_u32 v%d, v%d, 1, 1" % (t1, VC))
    a("v_add3_u32 v%d, v%d, v%d, s%d" % (t0, t0, t1, ST))
    a("v_and_b32 v%d, 1, v%d" % (t1, VC))
    a("v_lshl_add_u32 v%d, v%d, 3, v%d" % (t0, t1, t0))
    a("s_lshl_b32 s%d, s%d, 7" % (ST, S_NI))
    a("s_lshl_b32 s%d, s%d, 5" % (ST + 1, S_S))
    a("s_add_u32 s%d, s%d, s%d" % (ST, ST, ST + 1))
    a("v_lshl_add_u32 v%d, v%d, 2, s%d" % (t1, VQ, ST))
    a("v_lshlrev_b32 v%d, 2, v%d" % (t2, t0))
    a("s_mov_b32 s%d, 0x%x" % (ST, WS_G))
    for mt in range(4):
        a("buffer_load_dword v%d, v%d, s[%d:%d], s%d offen offset:%d" % (VG + mt, t2, sH, sH + 3, ST, mt * 8))
    srd(a, sP, P_DSK, 2048)
    a("v_lshlrev_b32 v%d, 1, v%d" % (t2, t1))
    for j in range(2):
        a("buffer_load_dwordx2 v[%d:%d], v%d, s[%d:%d], 0 offen offset:%d" % (VDS + 2 * j, VDS + 2 * j + 1, t2, sP, sP + 3, j * 32))
    srd(a, sP, P_X, 2048 * 1024 * 2)
    a("v_lshl_add_u32 v%d, v%d, 11, v%d" % (t2, t0, t2))
    for mt in range(4):
        a("v_add_u32 v%d, 0x%x, v%d" % (t3, mt * 2 * 2048, t2))
        for j in range(2):
            b = VXD + (j * 4 + mt) * 2
            a("buffer_load_dwordx2 v[%d:%d], v%d, s[%d:%d], 0 offen offset:%d" % (b, b + 1, t3, sP, sP + 3, j * 32))
        a("v_lshlrev_b32 v%d, 1, v%d" % (VOUT + mt, t3))
    NEP = 14

    a("v_lshrrev_b32 v%d, 2, v%d" % (t0, VLANE))
    a("v_and_b32 v%d, 7, v%d" % (t1, t0))
    a("v_lshlrev_b32 v%d, 8, v%d" % (t0, t0))
    a("v_and_b32 v%d, 3, v%d" % (t2, VLANE))
    a("v_lshl_add_u32 v%d, v%d, 3, v%d" % (t0, t2, t0))
    for j in range(8):
        a("v_xor_b32 v%d, %d, v%d" % (t2, j, t1))
        a("v_lshl_add_u32 v%d, v%d, 5, v%d" % (VWR + j, t2, t0))
    a("v_lshrrev_b32 v%d, 1, v%d" % (t0, VC))
    a("v_xor_b32 v%d, v%d, v%d" % (t0, t0, VQ))
    a("v_lshlrev_b32 v%d, 7, v%d" % (t1, VC))
    a("v_lshl_add_u32 v%d, v%d, 4, v%d" % (VCR, t0, t1))
    a("v_xor_b32 v%d, 64, v%d" % (VCR + 1, VCR))
    for i in range(128):
        a("v_mov_b32 v%d, 0" % i)
    for i in range(128):
        a("v_accvgpr_write_b32 a%d, 0" % i)
    stp.stamp()
    a("s_waitcnt vmcnt(%d)" % (24 + NEP))
    a("s_barrier")
    stp.stamp()

    lg = Lgkm(a)
    NU = 16
    def unit_info(t, u):
        s, j = divmod(u, 8)
        slot = t % 4
        pb = BPOOL + ((t * NU + u) % NB) * 4
        if t < 14:
            reads = ["ds_read_b64_tr_b16 %s, v%d offset:%d" % (vr(pb + 2 * h, 2), VWR + j, slot * 16384 + s * 8192 + h * 4096) for h in range(2)]
            acc = lambda mt: vr(ACC1 + (j * 4 + mt) * 4, 4)
        else:
            reads = ["ds_read_b128 %s, v%d offset:%d" % (vr(pb, 4), VCR + s, slot * 16384 + j * 2048)]
            acc = lambda mt: ar(ACC2 + (j * 4 + mt) * 4, 4)
        mf = ["v_mfma_f32_16x16x32_bf16 %s, %s, %s, %s" % (acc(mt), vr(pb, 4), ar(ARING + slot * 32 + (s * 4 + mt) * 4, 4), acc(mt)) for mt in range(4)]
        return reads, mf

    def body(t):
        first, last = t == 0, t == NST - 1
        nsl = NU * 4 + (TU * 4 if last else 0)
        fill = [[] for _ in range(nsl + 1)]
        rid = {}
        seq = []
        for u in range(LA):
            reads, _ = unit_info(t, u)
            seq += [(("B", u), r) for r in reads]
        k = 0
        for it in seq:
            u = it[0][1]
            prev = u - NB + NU
            minslot = 0
            if prev >= NU - TU:
                minslot = (prev - (NU - TU) + 1) * 4
            k = max(k, minslot)
            fill[k].append(("lds", it)); k += 1
        base = TU * 4
        for u in range(LA, NU):
            reads, _ = unit_info(t, u)
            for kk, r in enumerate(reads):
                pos = max(base + 4 * (u - LA) + 2 * kk, k)
                fill[pos].append(("lds", (("B", u), r)))
        if t + 3 < NST and not opt.get("k2_noload"):
            pos = 1
            for kind, x in dma_list(t + 3):
                fill[pos].append(("raw", x))
                pos += 2 if kind == "dma" else 1 if kind == "m0" else 0
            pos = base + 1
            for kind, x in a_list(t + 3):
                fill[pos].append(("raw", x))
                pos += opt.get("k2_astep", 4) if kind == "ld" else 0
        mfl = []
        if not first:
            for u in range(NU - TU, NU):
                _, mf = unit_info(t - 1, u)
                mfl += [(m, None) for m in mf]
        else:
            mfl += [(None, None)] * (TU * 4)
        for u in range(NU if last else NU - TU):
            _, mf = unit_info(t, u)
            mfl += [(m, [("B", u)]) for m in mf]
        for k, (m, deps) in enumerate(mfl):
            for kind, it in fill[k]:
                if kind == "lds":
                    key, x = it
                    if opt.get("k2_nolds"):
                        rid.setdefault(key, []).append(0)
                    else:
                        rid.setdefault(key, []).append(lg.issue(x))
                else:
                    a(it)
                    if m is None and "m0" in it:
                        a("s_nop 0")
            if m is not None:
                if deps:
                    ids = []
                    for d in deps:
                        ids += rid[d]
                    lg.need(ids)
                if not opt.get("k2_nomfma"):
                    a(m)
                elif fill[k]:
                    a("s_nop 0")
        assert not fill[len(mfl)]
        if not last:
            n = 0
            for tt in (t + 2, t + 3):
                if tt < NST:
                    n += 12
            if t + 1 <= 2:
                n += NEP
            if opt.get("k2_noload"):
                n = 0
            a("s_waitcnt vmcnt(%d) lgkmcnt(0)" % n)
            lg.reset()
            a("s_barrier")

    for t in range(NST):
        body(t)
        if t in (3, 13):
            stp.stamp()
    a("s_nop 7")
    stp.stamp()
    W1 = 128; W2 = 132
    E = 136
    for mt in range(4):
        a("v_sub_f32 v%d, 1.0, v%d" % (W1 + mt, VG + mt))
        a("v_cvt_pk_bf16_f32 v%d, v%d, v%d" % (W1 + mt, W1 + mt, W1 + mt))
        a("v_lshlrev_b32 v%d, 16, v%d" % (W1 + mt, W1 + mt))
        a("v_add_f32 v%d, v%d, v%d" % (W2 + mt, VG + mt, VG + mt))
    def combine(j, mt):
        b = (j * 4 + mt) * 4
        for r in range(4):
            a("v_accvgpr_read_b32 v%d, a%d" % (E + r, ACC2 + b + r))
        for r in range(4):
            a("v_mul_f32 v%d, v%d, v%d" % (ACC1 + b + r, W1 + mt, ACC1 + b + r))
        for r in range(4):
            a("v_fmac_f32 v%d, v%d, v%d" % (ACC1 + b + r, W2 + mt, E + r))
    for jj in range(1, 4):
        a("s_add_u32 s%d, s%d, %d" % (ST, S_S, jj))
        a("s_and_b32 s%d, s%d, 3" % (ST, ST))
        a("s_lshl_b32 s%d, s%d, 2" % (ST + 1, S_TILE))
        a("s_add_u32 s%d, s%d, s%d" % (ST, ST, ST + 1))
        a("s_mul_i32 s%d, s%d, 3" % (ST, ST))
        a("s_add_u32 s%d, s%d, %d" % (ST, ST, jj - 1))
        a("s_lshl_b32 s%d, s%d, 2" % (ST, ST))
        a("s_add_u32 s%d, s%d, s%d" % (ST, ST, S_W))
        a("s_lshl_b32 s%d, s%d, 13" % (ST, ST))
        a("s_add_u32 s%d, s%d, 0x%x" % (ST + 2 + jj, ST, WS_EX))
    for j in range(2, 8):
        for mt in range(4):
            combine(j, mt)
            b = ACC1 + (j * 4 + mt) * 4
            a("buffer_store_dwordx4 v[%d:%d], v%d, s[%d:%d], s%d offen offset:%d sc1" % (
                b, b + 3, VA + (j & 1), sH, sH + 3, ST + 2 + (j >> 1), mt * 1024))
    for j in range(2):
        for mt in range(4):
            combine(j, mt)
            b = ACC1 + (j * 4 + mt) * 4
            xb = VXD + (j * 4 + mt) * 2
            db = VDS + 2 * j
            for h in range(2):
                a("v_lshlrev_b32 v%d, 16, v%d" % (E, xb + h))
                a("v_and_b32 v%d, 0xffff0000, v%d" % (E + 1, xb + h))
                a("v_lshlrev_b32 v%d, 16, v%d" % (E + 2, db + h))
                a("v_and_b32 v%d, 0xffff0000, v%d" % (E + 3, db + h))
                a("v_mul_f32 v%d, v%d, v%d" % (E, E, E + 2))
                a("v_mul_f32 v%d, v%d, v%d" % (E + 1, E + 1, E + 3))
                a("v_cvt_pk_bf16_f32 v%d, v%d, v%d" % (E, E, E + 1))
                a("v_and_b32 v%d, 0xffff0000, v%d" % (E + 1, E))
                a("v_lshlrev_b32 v%d, 16, v%d" % (E, E))
                a("v_fmac_f32 v%d, v%d, v%d" % (b + 2 * h, VG + mt, E))
                a("v_fmac_f32 v%d, v%d, v%d" % (b + 2 * h + 1, VG + mt, E + 1))
    stp.stamp()
    a("s_waitcnt vmcnt(0)")
    stp.stamp()
    a("s_lshl_b32 s%d, s%d, 7" % (ST + 7, S_TILE))
    a("s_lshl_b32 s%d, s%d, 4" % (ST, S_W))
    a("s_add_u32 s%d, s%d, s%d" % (ST + 7, ST + 7, ST))
    a("s_add_u32 s%d, s%d, 0x%x" % (ST + 7, ST + 7, WS_FLG))
    a("s_lshl_b32 s%d, s%d, 2" % (ST, S_S))
    a("s_add_u32 s%d, s%d, s%d" % (ST, ST, ST + 7))
    a("v_mov_b32 v%d, 1" % E)
    a("s_mov_b64 exec, 1")
    a("buffer_store_dword v%d, off, s[%d:%d], s%d sc1" % (E, sH, sH + 3, ST))
    a("s_mov_b64 exec, -1")
    a("s_lshl_b32 s%d, s%d, 2" % (ST, S_TILE))
    a("s_add_u32 s%d, s%d, s%d" % (ST, ST, S_S))
    a("s_mul_i32 s%d, s%d, 12" % (ST, ST))
    a("s_add_u32 s%d, s%d, s%d" % (ST, ST, S_W))
    a("s_lshl_b32 s%d, s%d, 13" % (ST, ST))
    a("s_add_u32 s%d, s%d, 0x%x" % (ST + 3, ST, WS_EX))
    a("s_add_u32 s%d, s%d, 0x8000" % (ST + 4, ST + 3))
    a("s_add_u32 s%d, s%d, 0x8000" % (ST + 5, ST + 4))
    a("s_mov_b32 s%d, 0x40000" % (ST + 9))
    a.lab("k2_poll")
    a("buffer_load_dwordx4 v[%d:%d], off, s[%d:%d], s%d sc1" % (E, E + 3, sH, sH + 3, ST + 7))
    a("s_waitcnt vmcnt(0)")
    a("v_and_b32 v%d, v%d, v%d" % (E, E, E + 1))
    a("v_and_b32 v%d, v%d, v%d" % (E + 2, E + 2, E + 3))
    a("v_and_b32 v%d, v%d, v%d" % (E, E, E + 2))
    a("s_nop 0")
    a("v_readfirstlane_b32 s%d, v%d" % (ST, E))
    a("s_cmp_eq_u32 s%d, 1" % ST)
    a("s_cbranch_scc1 k2_ready")
    a("s_sleep 2")
    a("s_sub_u32 s%d, s%d, 1" % (ST + 9, ST + 9))
    a("s_cmp_lg_u32 s%d, 0" % (ST + 9))
    a("s_cbranch_scc1 k2_poll")
    a.lab("k2_ready")
    stp.stamp()
    R = 32
    for sl in range(3):
        for k in range(8):
            b = R + (sl * 8 + k) * 4
            a("buffer_load_dwordx4 v[%d:%d], v%d, s[%d:%d], s%d offen offset:%d sc1" % (
                b, b + 3, VA + (k >> 2), sH, sH + 3, ST + 3 + sl, (k & 3) * 1024))
    for k in range(8):
        j, mt = k >> 2, k & 3
        b = ACC1 + k * 4
        a("s_waitcnt vmcnt(%d)" % (23 - (16 + k) + k))
        for sl in range(3):
            rb = R + (sl * 8 + k) * 4
            for h in range(2):
                a("v_pk_add_f32 v[%d:%d], v[%d:%d], v[%d:%d]" % (b + 2 * h, b + 2 * h + 1, b + 2 * h, b + 2 * h + 1, rb + 2 * h, rb + 2 * h + 1))
        a("buffer_store_dwordx4 v[%d:%d], v%d, s[%d:%d], 0 offen offset:%d" % (b, b + 3, VOUT + mt, sO, sO + 3, j * 64))
    if opt.get("stamps"):
        stp.stamp()
        a("s_waitcnt vmcnt(0)")
    stp.dump(sH, S_W, 250)
    a.lab("k2_done")
    a("s_endpgm")


def desc(name, nv, ns, acc):
    return """.amdhsa_kernel %s
  .amdhsa_next_free_vgpr %d
  .amdhsa_next_free_sgpr %d
  .amdhsa_accum_offset %d
  .amdhsa_group_segment_fixed_size 0
  .amdhsa_kernarg_size 136
  .amdhsa_user_sgpr_count 2
  .amdhsa_user_sgpr_kernarg_segment_ptr 1
  .amdhsa_system_sgpr_workgroup_id_x 1
.end_amdhsa_kernel
""" % (name, nv, ns, acc)

def build(opt):
    hdr = open("cdna_kernels/%s.s.ref" % NAME).read().split("; Override launch")[0]
    out = hdr
    out += "; @launch kernel=k1_kernel grid=(256,1,1) block=(256,1,1) lds=%d\n" % K1_LDS
    out += "; @launch kernel=k2_kernel grid=(256,1,1) block=(256,1,1) lds=%d\n" % opt.get("k2_lds", K2_LDS)
    out += '.amdgcn_target "amdgcn-amd-amdhsa--gfx950"\n.text\n'
    for nm, fn in (("k1_kernel", gen_k1), ("k2_kernel", gen_k2)):
        a = Asm()
        fn(a, opt)
        out += ".globl %s\n.p2align 8\n.type %s,@function\n" % (nm, nm) + a.text()
    out += '.section .rodata,"a"\n.p2align 6\n'
    out += desc("k1_kernel", 464, 100, 256)
    out += ".p2align 6\n"
    out += desc("k2_kernel", 512, 100, 256)
    return out

if __name__ == "__main__":
    opt = {}
    path = "cdna_kernels/%s.s" % NAME
    for x in sys.argv[1:]:
        if "=" in x:
            k, v = x.split("=", 1)
            try:
                v = int(v)
            except ValueError:
                pass
            opt[k] = v
        else:
            path = x
    open(path, "w").write(build(opt))
    print("wrote", path)
```

```python
import sys

NAME = "gated_mix__ssm_conv_s5__glu_gated_reglu__prompt"

def vr(b, n=1, f="v"):
    return "%s%d" % (f, b) if n == 1 else "%s[%d:%d]" % (f, b, b + n - 1)
def ar(b, n=1):
    return vr(b, n, "a")

WS_G = 24 << 20
WS_AGG = 25 << 20
WS_FH = 26 << 20
WS_FX = WS_FH + 0x8000
WS_FA = WS_FH + 0xC000
WS_EX = 32 << 20
WS_STAMP = 60 << 20
WS_SIZE = 64 << 20

def kptr(i):
    return 36 + 2 * i
P_X, P_LRE, P_LIM, P_BRE, P_BIM, P_CRE, P_CIM, P_LDT, P_DSK, P_BX, P_WG, P_WU, P_WD, P_GW, P_OUT, P_DBG, P_WS = range(17)

def srd_l(d, p, nbytes):
    return ["s_mov_b32 s%d, s%d" % (d, kptr(p)), "s_mov_b32 s%d, s%d" % (d + 1, kptr(p) + 1),
            "s_mov_b32 s%d, 0x%x" % (d + 2, nbytes), "s_mov_b32 s%d, 0x20000" % (d + 3)]

class Em:
    def __init__(self):
        self.l = []
        self.tail = []
        self.ln = 0; self.ldone = 0
        self.vn = 0; self.vdone = 0
        self.lid = {}; self.vid = {}
        self.uid = 0
        self.cond = False
        self.group = None
        self.vgrp = []
    def raw(self, s):
        self.l.append(s if s.endswith(":") else "    " + s)
    def __call__(self, s, key=None):
        self.raw(s)
        if s.startswith("buffer_") and not self.cond:
            self.vn += 1
            self.vgrp.append(self.group)
            if key is not None:
                self.vid.setdefault(key, []).append(self.vn)
        elif s.startswith("ds_"):
            self.ln += 1
            if key is not None:
                self.lid.setdefault(key, []).append(self.ln)
    def lneed(self, keys):
        m = max([max(self.lid[k]) for k in keys])
        if m > self.ldone:
            out = min(self.ln - m, 15)
            self.raw("s_waitcnt lgkmcnt(%d)" % out)
            self.ldone = self.ln - out
    def vcount(self, keys):
        best = None
        for k in keys:
            for i in self.vid[k]:
                g = self.vgrp[i - 1]
                out = sum(1 for gg in self.vgrp[i:] if gg is None or gg == g)
                if best is None or out < best:
                    best = out
        m = max([max(self.vid[k]) for k in keys])
        return m, best
    def vneed(self, keys):
        m, out = self.vcount(keys)
        if m > self.vdone:
            assert out <= 63
            self.raw("s_waitcnt vmcnt(%d)" % out)
            if self.vgrp[m - 1] is None:
                self.vdone = m
    def sync(self, vkeys=None):
        if vkeys:
            m, out = self.vcount(vkeys)
            assert out <= 63
            self.raw("s_waitcnt vmcnt(%d) lgkmcnt(0)" % out)
            if self.vgrp[m - 1] is None:
                self.vdone = max(self.vdone, m)
        else:
            self.raw("s_waitcnt lgkmcnt(0)")
        self.ldone = self.ln
        self.raw("s_barrier")
    def newlab(self, p):
        self.uid += 1
        return "%s_%d" % (p, self.uid)
    def item(self, it):
        if isinstance(it, list):
            for x in it:
                self.item(x)
        elif isinstance(it, str):
            self(it)
        else:
            k = it[0]
            if k == "k":
                self(it[2], key=it[1])
            elif k == "lneed":
                self.lneed(it[1])
            elif k == "vneed":
                self.vneed(it[1])
            elif k == "cond":
                self.cond = True; self(it[1]); self.cond = False
            elif k == "fn":
                it[1]()
            elif k in ("at", "skip", "mark4"):
                pass
            else:
                raise ValueError(it)
    def text(self):
        return "\n".join(self.l + self.tail) + "\n"

def place_stream(fill, items, start, cap, limit):
    pos = start
    k = 0
    while k < len(items):
        it = items[k]
        if isinstance(it, tuple) and it[0] == "at":
            pos = max(pos, it[1]); k += 1; continue
        if isinstance(it, tuple) and it[0] == "skip":
            pos += it[1]; k += 1; continue
        if isinstance(it, tuple) and it[0] == "brk":
            return items[k + 1:]
        while pos < limit and len(fill[pos]) >= cap:
            pos += 1
        if pos >= limit:
            return items[k:]
        fill[pos].append(it)
        if isinstance(it, list):
            pos += 1
        k += 1
    return []

STG = 69632
L_BR, L_BI, L_G, L_U, L_X = 0, 4096, 8192, 22528, 36864
L_T = 2 * STG
LDS_BYTES = L_T + 8192

def gen(opt):
    a = Em()
    STAMPS = opt.get("stamps")
    ACCS = 0; ACCG = 64; TMP = 144
    VDX = 176; VDW = 184; VDB = 191
    VP = 193; VX = 197; VW = 201; VPF = 203
    VLAM = 204; VCOEF = 208; VL16 = 212; VL256 = 216; VLSEG = 220; VL8 = 244
    VLANE = 224; VSEG = 225; VC = 226; VQ = 227
    SA = 228; S16 = 232; PP = 236
    VFL = 248; VST = 249; PR = 250
    VPB = 235
    ADUM = 255
    ACCU = 0; ACCG2 = 112; ABUF = 144; BPOOL = 176
    sX, sW, sB, sH, sD, sP, sPF = 4, 8, 12, 16, 20, 24, 96
    S_W, S_MI, S_NJ, S_OX, S_OW, S_CNT, S_OPF, S_IPF, S_OPB = 28, 29, 30, 31, 32, 33, 34, 35, 3
    S_M0 = 70
    ST = 80
    S_S2, S_TILE = 100, 101
    LA = opt.get("k1_la", 6); NB = 8; TU = 4
    CAP = opt.get("k1_cap", 2)
    def gacc(p, mt):
        return ("v", ACCG + (p * 4 + mt) * 4) if p < 5 else ("a", ACCG2 + ((p - 5) * 4 + mt) * 4)

    nst = [3]
    def stamp(lvl=1):
        if STAMPS and (STAMPS & lvl):
            a.raw("s_memrealtime s[90:91]" if opt.get("rt") else "s_memtime s[90:91]")
            a.raw("s_waitcnt lgkmcnt(0)")
            a.ldone = a.ln
            a.raw("v_writelane_b32 v%d, s90, %d" % (VST, nst[0]))
            nst[0] += 1

    a.raw(NAME + "_kernel:")
    a("s_cmp_ge_u32 s2, 256")
    a("s_cbranch_scc1 k_done")
    if STAMPS:
        a("s_memtime s[90:91]")
        a("s_memrealtime s[92:93]")
    a("s_load_dwordx16 s[36:51], s[0:1], 0")
    a("s_load_dwordx16 s[52:67], s[0:1], 64")
    a("s_load_dwordx2 s[68:69], s[0:1], 128")
    T0 = TMP
    t0, t1, t2, t3 = T0 + 2, T0 + 3, T0 + 4, T0 + 5
    a("v_lshrrev_b32 v%d, 6, v0" % T0)
    a("v_and_b32 v%d, 63, v0" % VLANE)
    a("v_readfirstlane_b32 s%d, v%d" % (S_W, T0))
    a("s_and_b32 s%d, s2, 7" % ST)
    a("s_lshr_b32 s%d, s2, 3" % (ST + 1))
    a("s_and_b32 s%d, s%d, 7" % (S_MI, ST + 1))
    a("s_lshr_b32 s%d, s%d, 3" % (ST + 1, ST + 1))
    a("s_lshl_b32 s%d, s%d, 2" % (ST, ST))
    a("s_add_u32 s%d, s%d, s%d" % (S_NJ, ST, ST + 1))
    if opt.get("map2", 1):
        a("s_lshr_b32 s%d, s%d, 3" % (S_S2, S_NJ))
        a("s_and_b32 s%d, s%d, 7" % (S_TILE, S_NJ))
        a("s_lshl_b32 s%d, s%d, 3" % (ST, S_MI))
        a("s_add_u32 s%d, s%d, s%d" % (S_TILE, S_TILE, ST))
    else:
        a("s_and_b32 s%d, s2, 7" % ST)
        a("s_lshr_b32 s%d, s%d, 1" % (S_S2, ST))
        a("s_and_b32 s%d, s2, 1" % S_TILE)
        a("s_lshl_b32 s%d, s%d, 5" % (S_TILE, S_TILE))
        a("s_lshr_b32 s%d, s2, 3" % ST)
        a("s_add_u32 s%d, s%d, s%d" % (S_TILE, S_TILE, ST))
    a("v_and_b32 v%d, 15, v%d" % (VC, VLANE))
    a("v_lshrrev_b32 v%d, 4, v%d" % (VQ, VLANE))
    a("s_lshl_b32 s%d, s%d, 2" % (ST, S_W))
    a("v_add_u32 v%d, s%d, v%d" % (VSEG, ST, VQ))
    a("s_lshl_b32 s%d, s%d, 8" % (ST, S_MI))
    a("s_lshl_b32 s%d, s%d, 6" % (ST + 1, S_W))
    a("s_add_u32 s%d, s%d, s%d" % (ST, ST, ST + 1))
    a("v_lshrrev_b32 v%d, 5, v%d" % (t0, VLANE))
    a("v_lshlrev_b32 v%d, 4, v%d" % (t0, t0))
    a("v_and_b32 v%d, 8, v%d" % (t1, VLANE))
    a("v_add3_u32 v%d, v%d, v%d, s%d" % (t0, t0, t1, ST))
    a("v_bfe_u32 v%d, v%d, 4, 1" % (t1, VLANE))
    a("v_add_u32 v%d, v%d, v%d" % (t0, t0, t1))
    a("v_lshlrev_b32 v%d, 11, v%d" % (t0, t0))
    a("v_and_b32 v%d, 7, v%d" % (t1, VLANE))
    a("v_xor_b32 v%d, v%d, v%d" % (t1, t1, VQ))
    a("v_xor_b32 v%d, 4, v%d" % (t2, t1))
    a("v_lshl_add_u32 v%d, v%d, 4, v%d" % (t1, t1, t0))
    a("v_lshl_add_u32 v%d, v%d, 4, v%d" % (t2, t2, t0))
    for i in range(8):
        off = ((i & 1) * 32 + (i >> 1) * 2) * 2048 - (i & 3) * 1024
        a("v_add_u32 v%d, 0x%x, v%d" % (VDX + i, off, t2 if i & 1 else t1))
    a("s_and_b32 s%d, s%d, 1" % (ST + 1, S_W))
    a("s_lshl_b32 s%d, s%d, 4" % (ST + 1, ST + 1))
    a("s_lshl_b32 s%d, s%d, 5" % (ST, S_NJ))
    a("s_add_u32 s%d, s%d, s%d" % (ST, ST, ST + 1))
    a("v_lshrrev_b32 v%d, 3, v%d" % (t0, VLANE))
    a("v_add_u32 v%d, s%d, v%d" % (t0, ST, t0))
    a("v_lshlrev_b32 v%d, 11, v%d" % (t0, t0))
    a("v_and_b32 v%d, 7, v%d" % (t1, VLANE))
    a("v_xor_b32 v%d, v%d, v%d" % (t1, t1, VQ))
    a("v_xor_b32 v%d, 4, v%d" % (t2, t1))
    a("v_lshl_add_u32 v%d, v%d, 4, v%d" % (VDB, t1, t0))
    a("v_lshl_add_u32 v%d, v%d, 4, v%d" % (t2, t2, t0))
    a("v_add_u32 v%d, 0x%x, v%d" % (VDB + 1, 8 * 2048 - 1024, t2))
    a("s_and_b32 s%d, s%d, 1" % (ST, S_W))
    a("s_mul_i32 s%d, s%d, 448" % (ST, ST))
    a("s_and_b32 s%d, s%d, 1" % (ST + 1, S_NJ))
    a("s_lshl_b32 s%d, s%d, 1" % (ST + 1, ST + 1))
    a("s_mul_i32 s%d, s%d, 224" % (ST + 2, S_NJ))
    a("s_movk_i32 s%d, 4682" % (ST + 3))
    a("s_movk_i32 s%d, 7168" % (ST + 5))
    for i in range(7):
        a("v_add_u32 v%d, s%d, v%d" % (t0, ST, VLANE))
        if i:
            a("v_add_u32 v%d, %d, v%d" % (t0, 64 * i, t0))
        a("v_mul_u32_u24 v%d, s%d, v%d" % (t1, ST + 3, t0))
        a("v_lshrrev_b32 v%d, 16, v%d" % (t1, t1))
        a("v_mul_u32_u24 v%d, 14, v%d" % (t2, t1))
        a("v_sub_u32 v%d, v%d, v%d" % (t0, t0, t2))
        a("v_add_u32 v%d, s%d, v%d" % (t0, ST + 1, t0))
        a("v_subrev_u32 v%d, 14, v%d" % (t2, t0))
        a("v_min_u32 v%d, v%d, v%d" % (t0, t0, t2))
        a("v_and_b32 v%d, 0x33, v%d" % (t2, t1))
        a("v_and_b32 v%d, 4, v%d" % (t3, t1))
        a("v_lshl_or_b32 v%d, v%d, 1, v%d" % (t2, t3, t2))
        a("v_and_b32 v%d, 8, v%d" % (t3, t1))
        a("v_lshrrev_b32 v%d, 1, v%d" % (t3, t3))
        a("v_or_b32 v%d, v%d, v%d" % (t2, t2, t3))
        a("v_mul_u32_u24 v%d, s%d, v%d" % (t2, ST + 5, t2))
        a("v_lshl_add_u32 v%d, v%d, 4, v%d" % (t2, t0, t2))
        a("v_add_u32 v%d, s%d, v%d" % (t2, ST + 2, t2))
        a("v_subrev_u32 v%d, 0x%x, v%d" % (VDW + i, (i & 3) * 1024, t2))
    for par in range(2):
        a("s_lshl_b32 s%d, s%d, 13" % (ST, S_W))
        a("s_add_u32 s%d, s%d, 0x%x" % (S_M0 + 0 + par, ST, L_X + par * STG))
        a("s_add_u32 s%d, s%d, 0x%x" % (S_M0 + 2 + par, ST, L_X + par * STG + 4096))
        a("s_mul_i32 s%d, s%d, 7168" % (ST, S_W))
        a("s_add_u32 s%d, s%d, 0x%x" % (S_M0 + 4 + par, ST, L_G + par * STG))
        a("s_add_u32 s%d, s%d, 0x%x" % (S_M0 + 6 + par, ST, L_G + par * STG + 4096))
        a("s_lshl_b32 s%d, s%d, 11" % (ST, S_W))
        a("s_add_u32 s%d, s%d, 0x%x" % (S_M0 + 8 + par, ST, par * STG))
    a("s_mov_b32 s%d, 0" % S_OX)
    a("s_mov_b32 s%d, 0" % S_OW)
    a("s_lshr_b32 s%d, s2, 3" % ST)
    a("s_and_b32 s%d, s2, 7" % (ST + 1))
    a("s_lshl_b32 s%d, s%d, 6" % (ST + 2, ST))
    a("v_add_u32 v%d, s%d, v%d" % (t0, ST + 2, VLANE))
    a("v_lshlrev_b32 v%d, 11, v%d" % (t0, t0))
    a("s_mul_i32 s%d, s%d, 14336" % (ST + 2, ST))
    a("s_mul_i32 s%d, s%d, 896" % (ST + 3, ST + 1))
    a("s_add_u32 s%d, s%d, s%d" % (ST + 2, ST + 2, ST + 3))
    a("v_cmp_lt_u32 vcc, 6, v%d" % VLANE)
    a("v_mov_b32 v%d, 0x%x" % (t2, 7168 - 7 * 128))
    a("s_nop 0")
    a("v_cndmask_b32 v%d, 0, v%d, vcc" % (t1, t2))
    a("v_lshl_add_u32 v%d, v%d, 7, v%d" % (t1, VLANE, t1))
    a("v_add_u32 v%d, s%d, v%d" % (t1, ST + 2, t1))
    a("v_bfrev_b32 v%d, -2" % t2)
    a("v_cmp_lt_u32 vcc, 13, v%d" % VLANE)
    a("s_nop 1")
    a("v_cndmask_b32 v%d, v%d, v%d, vcc" % (t1, t1, t2))
    a("s_mul_i32 s%d, s2, %d" % (ST + 2, 224 * 128))
    a("v_lshl_add_u32 v%d, v%d, 7, s%d" % (t3, VLANE, ST + 2))
    a("v_cmp_lt_u32 vcc, 14, v%d" % VLANE)
    a("s_nop 1")
    a("v_cndmask_b32 v%d, v%d, v%d, vcc" % (t3, t3, t2))
    a("s_cmp_eq_u32 s%d, 0" % S_W)
    a("s_cselect_b64 vcc, -1, 0")
    a("v_cndmask_b32 v%d, v%d, v%d, vcc" % (t1, t1, t0))
    a("s_mov_b32 s%d, 0x%x" % (S_IPF, 64 * 7168))
    a("s_cselect_b32 s%d, 128, s%d" % (S_IPF, S_IPF))
    a("s_cmp_eq_u32 s%d, 3" % S_W)
    a("s_cselect_b64 vcc, -1, 0")
    a("v_cndmask_b32 v%d, v%d, v%d, vcc" % (VPF, t1, t3))
    VPF0 = T0 + 12
    a("v_cndmask_b32 v%d, v%d, v%d, vcc" % (VPF0, t1, t2))
    a("s_cselect_b32 s%d, 0, s%d" % (ST + 9, S_IPF))
    a("s_cselect_b32 s%d, %d, s%d" % (S_IPF, 15 * 128, S_IPF))
    a("s_mov_b32 s%d, 0" % S_OPF)
    a("s_lshl_b32 s%d, s%d, 7" % (ST + 1, ST + 1))
    a("s_lshl_b32 s%d, s%d, 2" % (ST, ST))
    a("s_add_u32 s%d, s%d, s%d" % (ST, ST, ST + 1))
    a("s_and_b32 s%d, s%d, 1" % (ST + 1, S_W))
    a("s_lshl_b32 s%d, s%d, 1" % (ST + 2, ST + 1))
    a("s_add_u32 s%d, s%d, s%d" % (ST, ST, ST + 2))
    a("v_add_u32 v%d, s%d, v%d" % (t0, ST, VLANE))
    a("v_lshlrev_b32 v%d, 11, v%d" % (t0, t0))
    a("v_cmp_lt_u32 vcc, 1, v%d" % VLANE)
    a("s_nop 1")
    a("v_cndmask_b32 v%d, v%d, v%d, vcc" % (VPB, t0, t2))

    if STAMPS:
        a("v_mov_b32 v%d, 0" % VST)
        if STAMPS & 16:
            a("s_memtime s[94:95]")
    a("s_waitcnt lgkmcnt(0)")
    if STAMPS:
        a("v_writelane_b32 v%d, s90, 0" % VST)
        a("v_writelane_b32 v%d, s92, 1" % VST)
        if STAMPS & 16:
            a("v_writelane_b32 v%d, s94, 3" % VST)
            nst[0] += 1
    stamp(16)
    for x in srd_l(sX, P_X, 2048 * 1024 * 2):
        a(x)
    a("s_cmp_lt_u32 s%d, 2" % S_W)
    a("s_cselect_b32 s%d, s%d, s%d" % (sW, kptr(P_WG), kptr(P_WU)))
    a("s_cselect_b32 s%d, s%d, s%d" % (sW + 1, kptr(P_WG) + 1, kptr(P_WU) + 1))
    a("s_mov_b32 s%d, 0x%x" % (sW + 2, 1024 * 3584 * 2))
    a("s_mov_b32 s%d, 0x20000" % (sW + 3))
    a("s_cselect_b32 s%d, s%d, s%d" % (sB, kptr(P_BRE), kptr(P_BIM)))
    a("s_cselect_b32 s%d, s%d, s%d" % (sB + 1, kptr(P_BRE) + 1, kptr(P_BIM) + 1))
    a("s_mov_b32 s%d, 0x%x" % (sB + 2, 1024 * 1024 * 2))
    a("s_mov_b32 s%d, 0x20000" % (sB + 3))
    a("s_cmp_eq_u32 s%d, 0" % S_W)
    a("s_cselect_b32 s%d, s%d, s%d" % (sPF, sX, sW))
    a("s_cselect_b32 s%d, s%d, s%d" % (sPF + 1, sX + 1, sW + 1))
    a("s_cselect_b32 s%d, s%d, s%d" % (sPF + 2, sX + 2, sW + 2))
    a("s_cmp_eq_u32 s%d, 3" % S_W)
    a("s_cselect_b32 s%d, s%d, s%d" % (sPF, kptr(P_WD), sPF))
    a("s_cselect_b32 s%d, s%d, s%d" % (sPF + 1, kptr(P_WD) + 1, sPF + 1))
    a("s_mov_b32 s%d, 0x20000" % (sPF + 3))

    def dma_list(par, npf=1):
        l = []
        for i in range(7):
            if i % 4 == 0:
                l.append(("m0", "s_mov_b32 m0, s%d" % (S_M0 + 4 + (i // 4) * 2 + par)))
            l.append(("dma", "buffer_load_dwordx4 v%d, s[%d:%d], s%d offen offset:%d lds" % (VDW + i, sW, sW + 3, S_OW, (i & 3) * 1024)))
        l.append(("m0", "s_mov_b32 m0, s%d" % (S_M0 + 8 + par)))
        for i in range(2):
            l.append(("dma", "buffer_load_dwordx4 v%d, s[%d:%d], s%d offen offset:%d lds" % (VDB + i, sB, sB + 3, S_OX, i * 1024)))
        for i in range(8):
            if i % 4 == 0:
                l.append(("m0", "s_mov_b32 m0, s%d" % (S_M0 + (i // 4) * 2 + par)))
            l.append(("dma", "buffer_load_dwordx4 v%d, s[%d:%d], s%d offen offset:%d lds" % (VDX + i, sX, sX + 3, S_OX, (i & 3) * 1024)))
        l.append(("adv", "s_add_u32 s%d, s%d, 128" % (S_OX, S_OX)))
        l.append(("adv", "s_add_u32 s%d, s%d, 0x%x" % (S_OW, S_OW, 64 * 7168)))
        for k in range(npf):
            l += [("pf", "buffer_load_dword a%d, v%d, s[%d:%d], s%d offen" % (ADUM, VPF, sPF, sPF + 3, S_OPF)),
                  ("adv", "s_add_u32 s%d, s%d, s%d" % (S_OPF, S_OPF, S_IPF)),
                  ("pf", "buffer_load_dword a%d, v%d, s[%d:%d], s%d offen" % (ADUM, VPB, sB, sB + 3, S_OPB)),
                  ("adv", "s_add_u32 s%d, s%d, 128" % (S_OPB, S_OPB))]
        return l
    def pf0():
        a("buffer_load_dword a%d, v%d, s[%d:%d], s%d offen" % (ADUM, VPF0, sPF, sPF + 3, S_OPF))
        a("s_add_u32 s%d, s%d, s%d" % (S_OPF, S_OPF, ST + 9))
    pf0()
    stamp(16)
    for kind, t in dma_list(0, npf=0):
        a(t, key="dma" if kind == "dma" else None)
        if kind == "m0":
            a("s_nop 0")
    stamp(16)
    pf0()
    a("buffer_load_dword a%d, v%d, s[%d:%d], 0 offen offset:128" % (ADUM, VPB, sB, sB + 3))
    stamp(16)
    a("s_mov_b32 s%d, 256" % S_OPB)
    for x in srd_l(sH, P_WS, WS_SIZE) + srd_l(sD, P_DBG, 256):
        a(x)
    a("s_lshl_b32 s%d, s%d, 2" % (ST, S_MI))
    a("s_add_u32 s%d, s%d, s%d" % (ST, ST, S_W))
    a("s_mul_i32 s%d, s%d, 640" % (ST, ST))
    a("s_lshl_b32 s%d, s%d, 2" % (ST + 1, S_NJ))
    a("s_add_u32 s%d, s%d, s%d" % (ST, ST, ST + 1))
    a("s_add_u32 s%d, s%d, 0x%x" % (ST, ST, WS_FH))
    a("v_lshl_add_u32 v%d, v%d, 7, s%d" % (VFL, VLANE, ST))
    a("s_lshl_b32 s%d, s%d, 7" % (ST, S_TILE))
    a("s_lshl_b32 s%d, s%d, 4" % (ST + 1, S_W))
    a("s_add_u32 s%d, s%d, s%d" % (ST, ST, ST + 1))
    a("s_lshl_b32 s%d, s%d, 2" % (ST + 1, S_S2))
    a("s_add_u32 s%d, s%d, s%d" % (ST, ST, ST + 1))
    a("s_add_u32 s%d, s%d, 0x%x" % (ST, ST, WS_FX))
    a("v_writelane_b32 v%d, s%d, 5" % (VFL, ST))
    a("s_lshl_b32 s%d, s%d, 7" % (ST, S_NJ))
    a("s_lshl_b32 s%d, s%d, 2" % (ST + 1, S_MI))
    a("s_add_u32 s%d, s%d, s%d" % (ST, ST, ST + 1))
    a("s_add_u32 s%d, s%d, 0x%x" % (ST, ST, WS_FA))
    a("v_writelane_b32 v%d, s%d, 6" % (VFL, ST))
    for k in range(4):
        a("v_mov_b32 v%d, 0" % (PP + k))
    a("s_mov_b64 exec, 0x7f")
    a("buffer_store_dword v%d, v%d, s[%d:%d], 0 offen sc1" % (PP, VFL, sH, sH + 3))
    a("s_mov_b64 exec, -1")
    VS0, VS1, VC1 = SA, SA + 1, SA + 2
    a("s_lshl_b32 s%d, s%d, 6" % (ST, S_NJ))
    a("v_lshl_add_u32 v%d, v%d, 1, s%d" % (VS0, VC, ST))
    a("v_lshlrev_b32 v%d, 5, v%d" % (VS1, VLANE))
    a("s_lshl_b32 s%d, s2, 3" % ST)
    a("s_lshl_b32 s%d, s%d, 1" % (ST + 1, S_W))
    a("s_add_u32 s%d, s%d, s%d" % (ST + 4, ST, ST + 1))
    a("s_lshl_b32 s%d, s%d, 11" % (ST + 6, ST + 4))
    a("s_and_b32 s%d, s%d, 1" % (ST + 1, S_W))
    a("s_lshl_b32 s%d, s2, 13" % ST)
    a("s_lshl_b32 s%d, s%d, 12" % (ST + 1, ST + 1))
    a("s_add_u32 s%d, s%d, s%d" % (ST, ST, ST + 1))
    a("v_lshl_add_u32 v%d, v%d, 7, s%d" % (t0, VLANE, ST))
    a("v_cmp_lt_u32 vcc, 31, v%d" % VLANE)
    a("s_nop 1")
    a("v_cndmask_b32 v%d, v%d, v%d, vcc" % (VC1, t0, t2))
    a("v_lshrrev_b32 v%d, 1, v%d" % (t0, VC))
    a("v_xor_b32 v%d, v%d, v%d" % (t0, t0, VQ))
    a("v_lshlrev_b32 v%d, 7, v%d" % (t1, VC))
    a("v_lshl_add_u32 v%d, v%d, 4, v%d" % (VP, t0, t1))
    a("v_xor_b32 v%d, 64, v%d" % (VP + 2, VP))
    a("v_add_u32 v%d, 0x%x, v%d" % (VP + 1, STG, VP))
    a("v_add_u32 v%d, 0x%x, v%d" % (VP + 3, STG, VP + 2))
    a("s_lshl_b32 s%d, s%d, 13" % (ST, S_W))
    a("s_add_u32 s%d, s%d, 0x%x" % (ST, ST, L_X))
    for k in range(4):
        a("v_add_u32 v%d, s%d, v%d" % (VX + k, ST, VP + k))
    a("v_lshrrev_b32 v%d, 5, v%d" % (t0, VLANE))
    a("v_lshlrev_b32 v%d, 4, v%d" % (t0, t0))
    a("v_bfe_u32 v%d, v%d, 2, 3" % (t1, VLANE))
    a("v_add_u32 v%d, v%d, v%d" % (t0, t0, t1))
    a("v_mul_u32_u24 v%d, 0xe0, v%d" % (t0, t0))
    a("v_and_b32 v%d, 3, v%d" % (t1, VLANE))
    a("v_lshl_add_u32 v%d, v%d, 3, v%d" % (VW, t1, t0))
    a("v_add_u32 v%d, 0x%x, v%d" % (VW + 1, STG, VW))
    a("v_lshlrev_b32 v%d, 4, v0" % t0)
    a("v_add_u32 v%d, 0x%x, v%d" % (t0, L_T, t0))
    a("ds_write_b128 v%d, v[%d:%d]" % (t0, PP, PP + 3))
    stamp(17)
    a.sync(["dma"])
    stamp(17)

    GX, GW = TMP, TMP + 16
    def small_loads():
        l = [srd_l(sP, P_GW, 2048)]
        l.append([("k", "gate", "buffer_load_dwordx4 v[%d:%d], v%d, s[%d:%d], 0 offen" % (GW, GW + 3, VS1, sP, sP + 3))])
        l.append([("k", "gate", "buffer_load_dwordx4 v[%d:%d], v%d, s[%d:%d], 0 offen offset:16" % (GW + 4, GW + 7, VS1, sP, sP + 3))])
        for r in range(2):
            for h in range(2):
                l.append([("k", "gate", "buffer_load_dwordx4 v[%d:%d], v%d, s[%d:%d], s%d offen offset:%d" % (
                    GX + r * 8 + h * 4, GX + r * 8 + h * 4 + 3, VS1, sX, sX + 3, ST + 6, r * 2048 + h * 16))])
        for k, p in enumerate((P_LRE, P_LIM, P_LDT)):
            l.append(srd_l(sP, p, 2048))
            l.append(["buffer_load_ushort v%d, v%d, s[%d:%d], 0 offen" % (PR + 2 * k, VS0, sP, sP + 3)])
            l.append(["buffer_load_ushort v%d, v%d, s[%d:%d], 0 offen offset:32" % (PR + 2 * k + 1, VS0, sP, sP + 3)])
        l.append(["s_cmp_lt_u32 s%d, 2" % S_W,
                  "s_cselect_b32 s%d, s%d, s%d" % (sP, kptr(P_CRE), kptr(P_CIM)),
                  "s_cselect_b32 s%d, s%d, s%d" % (sP + 1, kptr(P_CRE) + 1, kptr(P_CIM) + 1),
                  "s_mov_b32 s%d, 0x%x" % (sP + 2, 1024 * 1024 * 2)])
        return l
    VCH = TMP + 22; VCZ = TMP + 23
    def late_loads():
        return [["buffer_load_dword a%d, v%d, s[%d:%d], 0 offen" % (ADUM, VC1, sP, sP + 3)],
                "v_mov_b32 v%d, 0" % VCZ, "s_mov_b32 s%d, 0" % (ST + 4),
                [("k", "pc", "buffer_load_dword v%d, v%d, s[%d:%d], s%d offen sc1" % (VCH, VCZ, sD, sD + 3, ST + 4))]]

    def touch_stream():
        sT = 92
        u0 = S16
        l = []
        l += [srd_l(sT, P_WD, 3584 * 1024 * 2),
              "s_mul_i32 s%d, s%d, 0x%x" % (ST, S_S2, 896 * 2048), "s_and_b32 s%d, s%d, 7" % (ST + 1, S_TILE),
              "s_lshl_b32 s%d, s%d, 8" % (ST + 2, ST + 1), "s_add_u32 s%d, s%d, s%d" % (ST, ST, ST + 2),
              "v_mul_u32_u24 v%d, 0x%x, v%d" % (u0, 14 * 2048, VLANE),
              ["buffer_load_dword a%d, v%d, s[%d:%d], s%d offen" % (ADUM, u0, sT, sT + 3, ST)]]
        l += ["s_lshl_b32 s%d, s%d, 18" % (ST, ST + 1), "v_and_b32 v%d, 7, v%d" % (u0 + 1, VLANE),
              "v_lshlrev_b32 v%d, 15, v%d" % (u0 + 1, u0 + 1),
              ["buffer_load_dword a%d, v%d, s[%d:%d], s%d offen" % (ADUM, u0 + 1, sP, sP + 3, ST)]]
        l += ["v_sub_u32 v%d, 63, v%d" % (u0 + 2, VLANE), "v_lshlrev_b32 v%d, 26, v%d" % (u0 + 2, u0 + 2),
              "s_lshl_b32 s%d, s%d, 2" % (ST, S_MI), "s_add_u32 s%d, s%d, s%d" % (ST, ST, S_W),
              "s_mul_i32 s%d, s%d, 176" % (ST, ST), "s_and_b32 s%d, s%d, 1" % (ST + 2, S_NJ),
              "s_mul_i32 s%d, s%d, 7" % (ST + 3, S_NJ), "s_add_u32 s%d, s%d, s%d" % (ST + 3, ST + 3, ST + 2),
              "s_lshr_b32 s%d, s%d, 1" % (ST + 3, ST + 3), "s_add_u32 s%d, s%d, s%d" % (ST + 3, ST + 3, ST),
              "s_lshl_b32 s%d, s%d, 12" % (ST + 3, ST + 3),
              ["buffer_store_dword v%d, v%d, s[%d:%d], s%d offen sc1" % (u0, u0 + 2, sH, sH + 3, ST + 3)],
              "s_lshr_b32 s%d, s%d, 1" % (ST + 3, S_NJ), "s_lshl_b32 s%d, s%d, 2" % (ST + 3, ST + 3),
              "s_add_u32 s%d, s%d, s%d" % (ST + 3, ST + 3, ST + 2), "s_add_u32 s%d, s%d, 112" % (ST + 3, ST + 3),
              "s_add_u32 s%d, s%d, s%d" % (ST + 3, ST + 3, ST), "s_lshl_b32 s%d, s%d, 12" % (ST + 3, ST + 3),
              ["buffer_store_dword v%d, v%d, s[%d:%d], s%d offen sc1" % (u0, u0 + 2, sH, sH + 3, ST + 3)]]
        l += ["s_add_u32 s%d, s%d, 1" % (ST, S_S2), "s_and_b32 s%d, s%d, 3" % (ST, ST),
              "s_lshl_b32 s%d, s%d, 2" % (ST + 2, S_TILE), "s_add_u32 s%d, s%d, s%d" % (ST, ST, ST + 2),
              "s_mul_i32 s%d, s%d, 12" % (ST, ST), "s_add_u32 s%d, s%d, s%d" % (ST, ST, S_W),
              "s_lshl_b32 s%d, s%d, 12" % (ST, ST), "s_add_u32 s%d, s%d, 0x%x" % (ST, ST, WS_EX),
              ["buffer_store_dword v%d, v%d, s[%d:%d], s%d offen sc1" % (u0, u0 + 2, sH, sH + 3, ST)]]
        l += [srd_l(sT, P_OUT, 2048 * 1024 * 4),
              "s_lshr_b32 s%d, s%d, 3" % (ST, S_TILE), "s_lshl_b32 s%d, s%d, 20" % (ST, ST),
              "s_lshl_b32 s%d, s%d, 18" % (ST + 2, S_W), "s_add_u32 s%d, s%d, s%d" % (ST, ST, ST + 2),
              "s_lshl_b32 s%d, s%d, 9" % (ST + 2, ST + 1), "s_add_u32 s%d, s%d, s%d" % (ST, ST, ST + 2),
              "s_lshl_b32 s%d, s%d, 7" % (ST + 2, S_S2), "s_add_u32 s%d, s%d, s%d" % (ST, ST, ST + 2),
              ["buffer_store_dword v%d, v%d, s[%d:%d], s%d offen" % (u0, u0 + 2, sT, sT + 3, ST)]]
        return l

    def g_stream():
        l = [("vneed", ["gate"])]
        A0 = TMP + 30
        u0, u1, u2, u3 = TMP + 24, TMP + 25, TMP + 26, TMP + 27
        l.append("v_mov_b32 v%d, 0" % A0)
        l.append("v_mov_b32 v%d, 0" % (A0 + 1))
        for d in range(8):
            l.append("v_lshlrev_b32 v%d, 16, v%d" % (u0, GW + d))
            l.append("v_and_b32 v%d, 0xffff0000, v%d" % (u1, GW + d))
            for r in range(2):
                x = GX + r * 8 + d
                l.append("v_lshlrev_b32 v%d, 16, v%d" % (u2, x))
                l.append("v_and_b32 v%d, 0xffff0000, v%d" % (u3, x))
                l.append("v_mul_f32 v%d, v%d, v%d" % (u2, u2, u0))
                l.append("v_mul_f32 v%d, v%d, v%d" % (u3, u3, u1))
                l.append("v_cvt_pk_bf16_f32 v%d, v%d, v%d" % (u2, u2, u3))
                l.append("v_lshlrev_b32 v%d, 16, v%d" % (u3, u2))
                l.append("v_and_b32 v%d, 0xffff0000, v%d" % (u2, u2))
                l.append("v_add_f32 v%d, v%d, v%d" % (A0 + r, A0 + r, u3))
                l.append("v_add_f32 v%d, v%d, v%d" % (A0 + r, A0 + r, u2))
        for dpp in ("row_shr:1 row_mask:0xf bank_mask:0xf bound_ctrl:0", "row_shr:2 row_mask:0xf bank_mask:0xf bound_ctrl:0",
                    "row_shr:4 row_mask:0xf bank_mask:0xf bound_ctrl:0", "row_shr:8 row_mask:0xf bank_mask:0xf bound_ctrl:0",
                    "row_bcast:15 row_mask:0xa bank_mask:0xf", "row_bcast:31 row_mask:0xc bank_mask:0xf"):
            l.append(["s_nop 1", "v_add_f32_dpp v%d, v%d, v%d %s" % (A0, A0, A0, dpp),
                      "v_add_f32_dpp v%d, v%d, v%d %s" % (A0 + 1, A0 + 1, A0 + 1, dpp)])
        l += ["v_cvt_pk_bf16_f32 v%d, v%d, v%d" % (u0, A0, A0 + 1),
              "v_lshlrev_b32 v%d, 16, v%d" % (A0, u0), "v_and_b32 v%d, 0xffff0000, v%d" % (A0 + 1, u0),
              "v_mul_f32 v%d, 0xbfb8aa3b, v%d" % (A0, A0), "v_mul_f32 v%d, 0xbfb8aa3b, v%d" % (A0 + 1, A0 + 1),
              "v_exp_f32 v%d, v%d" % (A0, A0), ["v_exp_f32 v%d, v%d" % (A0 + 1, A0 + 1), "s_nop 0"],
              "v_add_f32 v%d, 1.0, v%d" % (A0, A0), "v_add_f32 v%d, 1.0, v%d" % (A0 + 1, A0 + 1),
              "v_rcp_f32 v%d, v%d" % (A0, A0), ["v_rcp_f32 v%d, v%d" % (A0 + 1, A0 + 1), "s_nop 0"],
              "v_cvt_pk_bf16_f32 v%d, v%d, v%d" % (u0, A0, A0 + 1),
              "v_lshlrev_b32 v%d, 16, v%d" % (A0, u0), "v_and_b32 v%d, 0xffff0000, v%d" % (A0 + 1, u0),
              "v_sub_u32 v%d, 63, v%d" % (u0, VLANE), "v_lshlrev_b32 v%d, 26, v%d" % (u0, u0),
              "s_lshl_b32 s%d, s%d, 2" % (ST, ST + 4), "s_add_u32 s%d, s%d, 0x%x" % (ST, ST, WS_G),
              "buffer_store_dwordx2 v[%d:%d], v%d, s[%d:%d], s%d offen sc1" % (A0, A0 + 1, u0, sH, sH + 3, ST)]
        return l

    def param_stream():
        l = []
        for k in range(6):
            l.append("v_lshlrev_b32 v%d, 16, v%d" % (PR + k, PR + k))
        for cg in range(2):
            lre, lim, ldt = PR + cg, PR + 2 + cg, PR + 4 + cg
            x0, x1, x2, x3, pr, pi = [TMP + 8 * cg + k for k in range(6)]
            LR, LI = VLAM + 2 * cg, VLAM + 2 * cg + 1
            l += ["v_mul_f32 v%d, 0x3fb8aa3b, v%d" % (x0, ldt),
                  ["v_exp_f32 v%d, v%d" % (x0, x0), "s_nop 0"],
                  "v_cvt_pk_bf16_f32 v%d, v%d, v%d" % (x0, x0, x0),
                  "v_lshlrev_b32 v%d, 16, v%d" % (x0, x0),
                  "v_mul_f32 v%d, v%d, v%d" % (x1, x0, lre),
                  "v_mul_f32 v%d, v%d, v%d" % (x2, x0, lim),
                  "v_mul_f32 v%d, 0x3fb8aa3b, v%d" % (x1, x1),
                  "v_exp_f32 v%d, v%d" % (x1, x1),
                  "v_mul_f32 v%d, 0.15915494, v%d" % (x2, x2),
                  "v_fract_f32 v%d, v%d" % (x2, x2),
                  "v_cos_f32 v%d, v%d" % (x3, x2),
                  ["v_sin_f32 v%d, v%d" % (x2, x2), "s_nop 0"],
                  "v_mul_f32 v%d, v%d, v%d" % (LR, x1, x3),
                  "v_mul_f32 v%d, v%d, v%d" % (LI, x1, x2),
                  "v_add_f32 v%d, -1.0, v%d" % (x0, LR),
                  "v_mul_f32 v%d, v%d, v%d" % (x1, lre, lre),
                  "v_fmac_f32 v%d, v%d, v%d" % (x1, lim, lim),
                  "v_rcp_f32 v%d, v%d" % (x1, x1),
                  "v_mul_f32 v%d, v%d, v%d" % (x2, x0, lre),
                  "v_fmac_f32 v%d, v%d, v%d" % (x2, LI, lim),
                  "v_mul_f32 v%d, v%d, v%d" % (x3, LI, lre),
                  "v_fma_f32 v%d, -v%d, v%d, v%d" % (x3, x0, lim, x3),
                  "v_mul_f32 v%d, v%d, v%d" % (VCOEF + 2 * cg, x2, x1),
                  "v_mul_f32 v%d, v%d, v%d" % (VCOEF + 2 * cg + 1, x3, x1)]
            def square(sr_, si_, dr, di):
                return ["v_mul_f32 v%d, v%d, v%d" % (x0, si_, si_),
                        "v_mul_f32 v%d, v%d, v%d" % (x1, sr_, si_),
                        "v_fma_f32 v%d, v%d, v%d, -v%d" % (dr, sr_, sr_, x0),
                        "v_add_f32 v%d, v%d, v%d" % (di, x1, x1)]
            l += square(LR, LI, pr, pi) + square(pr, pi, pr, pi) + square(pr, pi, VL8 + cg, VL8 + 2 + cg)
            l += square(VL8 + cg, VL8 + 2 + cg, VL16 + cg, VL16 + 2 + cg)
            lr_, li_ = VLSEG + cg, VLSEG + 2 + cg
            l += ["v_mov_b32 v%d, 1.0" % lr_, "v_mov_b32 v%d, 0" % li_]
            cr, ci = VL16 + cg, VL16 + 2 + cg
            for b in range(4):
                l += ["v_and_b32 v%d, %d, v%d" % (x2, 1 << b, VSEG),
                      "v_cmp_ne_u32 vcc, 0, v%d" % x2,
                      "v_mul_f32 v%d, v%d, v%d" % (x2, lr_, cr),
                      "v_fma_f32 v%d, -v%d, v%d, v%d" % (x2, li_, ci, x2),
                      "v_mul_f32 v%d, v%d, v%d" % (x3, lr_, ci),
                      "v_fmac_f32 v%d, v%d, v%d" % (x3, li_, cr),
                      "v_cndmask_b32 v%d, v%d, v%d, vcc" % (lr_, lr_, x2),
                      "v_cndmask_b32 v%d, v%d, v%d, vcc" % (li_, li_, x3)]
                if b < 3:
                    l += square(cr, ci, pr, pi)
                else:
                    l += square(cr, ci, VL256 + cg, VL256 + 2 + cg)
                cr, ci = pr, pi
        return l

    def pkf(d, s0, s1, s2, sel=None, neg=False):
        if opt.get("nopk", 1):
            return ["v_fma_f32 v%d, %sv%d, v%d, v%d" % (d + h, "-" if neg else "", s0 + (h if sel is None else sel), s1 + h, s2 + h)
                    for h in range(2)]
        t = "v_pk_fma_f32 v[%d:%d], v[%d:%d], v[%d:%d], v[%d:%d]" % (d, d + 1, s0, s0 + 1, s1, s1 + 1, s2, s2 + 1)
        if sel is not None:
            t += " op_sel:[%d,0,0] op_sel_hi:[%d,1,1]" % (sel, sel)
        if neg:
            t += " neg_lo:[1,0,0] neg_hi:[1,0,0]"
        return [t]
    def pkm(d, s0, s1, sel, neg=False):
        return ["v_mul_f32_e64 v%d, %sv%d, v%d" % (d + h, "-" if neg else "", s0 + sel, s1 + h) for h in range(2)]
    def quad_cmul_add(D, L, X, U, t):
        return pkf(t, L, X, U) + pkf(t + 2, L, X + 2, U + 2) + pkf(D, L + 2, X + 2, t, neg=True) + pkf(D + 2, L + 2, X, t + 2)
    def ureg(cg, isim, k):
        return ACCS + 32 * cg + 16 * isim + 2 * k

    VTA = VDX
    VL16B = VTA + 3
    T2 = 64
    TCH = [T2, TMP + 12]
    VONE = VPF
    S_AG, S_HS = 70, 71
    sAG = 92
    def set_flag(lane, need):
        return [("vneed", need), "s_mov_b64 exec, 0x%x" % (1 << lane),
                "buffer_store_dword v%d, v%d, s[%d:%d], 0 offen sc1" % (VONE, VFL, sH, sH + 3), "s_mov_b64 exec, -1"]

    def ssm_agg():
        l = []
        W = [[T2 + 8 * cg + 2 * k for k in range(4)] for cg in range(2)]
        cur = [[ureg(cg, 0, 0), ureg(cg, 1, 0)] for cg in range(2)]
        for k in range(1, 8):
            for cg in range(2):
                L = VLAM + 2 * cg
                sr_, si_ = cur[cg]
                free = [r for r in W[cg] if r not in (sr_, si_)]
                tr, ti = free[0], free[1]
                l += pkf(tr, L, sr_, ureg(cg, 0, k), sel=0)
                l += pkf(ti, L, si_, ureg(cg, 1, k), sel=0)
                cur[cg] = [sr_, si_, tr, ti]
            for cg in range(2):
                L = VLAM + 2 * cg
                sr_, si_, tr, ti = cur[cg]
                l += pkf(tr, L, si_, tr, sel=1, neg=True)
                l += pkf(ti, L, sr_, ti, sel=1)
                cur[cg] = [tr, ti]
        SB = T2 + 16
        for cg in range(2):
            sr_, si_ = cur[cg]
            l += ["v_mov_b32 v%d, v%d" % (SA + cg, sr_), "v_mov_b32 v%d, v%d" % (SA + 2 + cg, si_),
                  "v_mov_b32 v%d, v%d" % (SB + cg, sr_ + 1), "v_mov_b32 v%d, v%d" % (SB + 2 + cg, si_ + 1)]
        l += quad_cmul_add(S16, VL8, SA, SB, T2 + 20)
        l += ["v_lshlrev_b32 v%d, 4, v%d" % (VTA + 2, VC),
              "v_lshl_add_u32 v%d, v%d, 8, v%d" % (VTA, VSEG, VTA + 2),
              "v_add_u32 v%d, 0x%x, v%d" % (VTA, L_T, VTA),
              "ds_write_b128 v%d, v[%d:%d] offset:%d" % (VTA, S16, S16 + 3, 15 * 256)]
        return l
    def ssm_horner():
        l = []
        def rd(j):
            b = TCH[(j // 3) % 2] + 4 * (j % 3)
            return ("k", ("T", j), "ds_read_b128 v[%d:%d], v%d offset:%d" % (b, b + 3, VTA, j * 256))
        for j in range(6):
            l.append(rd(j))
        l.append(("skip", 4))
        cp = None
        for j in range(15):
            b = TCH[(j // 3) % 2] + 4 * (j % 3)
            l.append(("lneed", [("T", j)]))
            if j == 0:
                cp = b
                continue
            d = PP + 4 * (j % 2)
            l += quad_cmul_add(d, VL16, cp, b, T2 + 20)
            cp = d
            if j % 3 == 2 and j + 4 < 15:
                for jj in range(j + 4, min(j + 7, 15)):
                    l.append(rd(jj))
        assert cp == PP
        l += quad_cmul_add(PP + 4, VL16, PP, S16, T2 + 20)
        l += ["s_lshl_b32 s%d, s%d, 11" % (S_AG, S_NJ),
              "s_add_u32 s%d, s%d, 0x%x" % (S_AG, S_AG, WS_AGG),
              "s_lshl_b32 s%d, s%d, 8" % (ST, S_MI),
              "s_mov_b32 s%d, s%d" % (sAG + 2, ST),
              "s_add_u32 s%d, s%d, s%d" % (ST, ST, S_AG),
              "v_sub_u32 v%d, 15, v%d" % (VTA + 1, VSEG),
              "v_lshlrev_b32 v%d, 26, v%d" % (VTA + 1, VTA + 1),
              "v_add_u32 v%d, v%d, v%d" % (VTA + 1, VTA + 1, VTA + 2),
              ("k", "agg", "buffer_store_dwordx4 v[%d:%d], v%d, s[%d:%d], s%d offen sc1" % (PP + 4, PP + 7, VTA + 1, sH, sH + 3, ST)),
              ["s_add_u32 s%d, s%d, s%d" % (sAG, kptr(P_WS), S_AG), "s_addc_u32 s%d, s%d, 0" % (sAG + 1, kptr(P_WS) + 1)],
              "s_mov_b32 s%d, 0x20000" % (sAG + 3),
              "s_lshl_b32 s%d, s%d, 7" % (ST + 7, S_NJ), "s_add_u32 s%d, s%d, 0x%x" % (ST + 7, ST + 7, WS_FA),
              "s_lshl_b32 s%d, 1, s%d" % (ST + 5, S_MI), "s_sub_u32 s%d, s%d, 1" % (ST + 5, ST + 5)]
        return l
    def fa_flag():
        def f():
            m, out = a.vcount(["agg"])
            a.raw("s_cmp_lg_u32 s%d, 3" % S_W)
            a.raw("s_cbranch_scc1 k1_noflag")
            a.raw("s_waitcnt vmcnt(%d)" % out)
            a.raw("s_mov_b64 exec, 0x40")
            a.raw("buffer_store_dword v%d, v%d, s[%d:%d], 0 offen sc1" % (VONE, VFL, sH, sH + 3))
            a.raw("s_mov_b64 exec, -1")
            a.raw("k1_noflag:")
        return [("fn", f)]
    LB = [T2 + 4 * m for m in range(7)]
    def ssm_lb_loads():
        l = ["s_sub_u32 s%d, s%d, 7" % (ST, S_MI), "s_lshl_b32 s%d, s%d, 8" % (ST, ST),
             "v_add_u32 v%d, s%d, v%d" % (T2 + 28, ST, VTA + 2)]
        for j in range(7):
            l += ["v_add_u32 v%d, 0x%x, v%d" % (LB[j], j * 256, T2 + 28),
                  ("k", "lb", "buffer_load_dwordx4 v[%d:%d], v%d, s[%d:%d], 0 offen sc1" % (LB[j], LB[j] + 3, LB[j], sAG, sAG + 3))]
        return l
    def ssm_final():
        TT = T2 + 40
        l = [("vneed", ["lb"])]
        cp = LB[0]
        for j in range(1, 7):
            d = T2 + 32 + 4 * (j % 2)
            l += quad_cmul_add(d, VL256, cp, LB[j], TT)
            cp = d
        HA, HB = S16, PP + 4
        l += quad_cmul_add(HA, VLSEG, cp, PP, TT) + quad_cmul_add(HB, VL8, HA, SA, TT)
        W = [[T2 + 8 * cg + 2 * k for k in range(4)] for cg in range(2)]
        cur = []
        for cg in range(2):
            sr_, si_ = W[cg][0], W[cg][1]
            l += ["v_mov_b32 v%d, v%d" % (sr_, HA + cg), "v_mov_b32 v%d, v%d" % (sr_ + 1, HB + cg),
                  "v_mov_b32 v%d, v%d" % (si_, HA + 2 + cg), "v_mov_b32 v%d, v%d" % (si_ + 1, HB + 2 + cg)]
            cur.append([sr_, si_])
        Q = [T2 + 16 + 4 * cg for cg in range(2)]
        for k in range(8):
            nxt = []
            for cg in range(2):
                L = VLAM + 2 * cg
                sr_, si_ = cur[cg]
                tr, ti = [r for r in W[cg] if r not in (sr_, si_)]
                l += pkf(tr, L, sr_, ureg(cg, 0, k), sel=0)
                l += pkf(ti, L, si_, ureg(cg, 1, k), sel=0)
                nxt.append((sr_, si_, tr, ti))
            for cg in range(2):
                L = VLAM + 2 * cg
                sr_, si_, tr, ti = nxt[cg]
                l += pkf(tr, L, si_, tr, sel=1, neg=True)
                l += pkf(ti, L, sr_, ti, sel=1)
                cur[cg] = [tr, ti]
            for cg in range(2):
                C = VCOEF + 2 * cg
                sr_, si_ = cur[cg]
                l += pkm(Q[cg], C, sr_, 0)
                l += pkm(Q[cg] + 2, C, si_, 0, neg=True)
            for cg in range(2):
                C = VCOEF + 2 * cg
                sr_, si_ = cur[cg]
                l += pkf(ureg(cg, 0, k), C, si_, Q[cg], sel=1, neg=True)
                l += pkf(ureg(cg, 1, k), C, sr_, Q[cg] + 2, sel=1, neg=True)
        return l
    def ssm_store():
        vw_, vr_, tt = T2 + 24, T2 + 25, T2 + 26
        l = ["s_mul_i32 s%d, s%d, 8704" % (ST, S_W), "s_add_u32 s%d, s%d, 0x%x" % (ST, ST, STG),
             "v_mul_u32_u24 v%d, 0x88, v%d" % (vw_, VC), "v_lshl_add_u32 v%d, v%d, 3, v%d" % (vw_, VQ, vw_),
             "v_add_u32 v%d, s%d, v%d" % (vw_, ST, vw_), "v_bfe_u32 v%d, v%d, 2, 2" % (vr_, VLANE),
             "v_lshl_add_u32 v%d, v%d, 3, v%d" % (vr_, VQ, vr_), "v_mul_u32_u24 v%d, 0x88, v%d" % (vr_, vr_),
             "v_and_b32 v%d, 3, v%d" % (tt, VLANE), "v_lshl_add_u32 v%d, v%d, 3, v%d" % (vr_, tt, vr_),
             "v_add_u32 v%d, s%d, v%d" % (vr_, ST, vr_)]
        for isim in range(2):
            for cg in range(2):
                for mt in range(4):
                    b = ACCS + 32 * cg + 16 * isim + 4 * mt
                    l += ["v_cvt_pk_bf16_f32 v%d, v%d, v%d" % (b, b, b + 1), "v_cvt_pk_bf16_f32 v%d, v%d, v%d" % (b + 1, b + 2, b + 3),
                          ("k", ("tw", isim), "ds_write_b64 v%d, v[%d:%d] offset:%d" % (vw_, b, b + 1, isim * 4352 + cg * 2176 + mt * 32))]
        O = [T2 + 32 + 4 * k for k in range(8)]
        for isim in range(2):
            l.append(("lneed", [("tw", isim)]))
            for mt in range(4):
                for h in range(2):
                    o = O[isim * 4 + mt] + 2 * h
                    l.append(("k", ("tr", isim, mt), "ds_read_b64_tr_b16 v[%d:%d], v%d offset:%d" % (o, o + 1, vr_, isim * 4352 + h * 544 + mt * 32)))
        l.append("s_add_u32 s%d, s%d, 8192" % (S_AG, S_HS))
        st = []
        for isim in range(2):
            for mt in range(4):
                o = O[isim * 4 + mt]
                st.append([("lneed", [("tr", isim, mt)]),
                           ("k", ("h", 4), "buffer_store_dwordx4 v[%d:%d], v%d, s[%d:%d], s%d offen offset:%d sc1" % (
                               o, o + 3, VL16B, sH, sH + 3, S_AG if isim else S_HS, mt * 1024))])
        return l, st

    def glu_setup():
        return ["s_lshl_b32 s%d, s%d, 2" % (ST, S_MI),
                "s_add_u32 s%d, s%d, s%d" % (ST, ST, S_W),
                "s_mul_i32 s%d, s%d, 176" % (ST + 8, ST),
                "s_and_b32 s%d, s%d, 1" % (ST + 1, S_NJ),
                "s_mul_i32 s%d, s%d, 7" % (ST + 2, S_NJ),
                "s_add_u32 s%d, s%d, s%d" % (ST + 3, ST + 2, ST + 1),
                "s_lshr_b32 s%d, s%d, 1" % (ST + 3, ST + 3),
                "s_add_u32 s%d, s%d, s%d" % (ST + 3, ST + 3, ST + 8),
                "s_lshl_b32 s%d, s%d, 12" % (ST + 3, ST + 3),
                "s_mul_i32 s%d, s%d, 7" % (ST + 5, ST + 1),
                "s_add_u32 s%d, s%d, 6" % (ST + 2, ST + 2),
                "s_sub_u32 s%d, s%d, s%d" % (ST + 2, ST + 2, ST + 5),
                "s_lshr_b32 s%d, s%d, 1" % (ST + 2, ST + 2),
                "s_add_u32 s%d, s%d, s%d" % (ST + 2, ST + 2, ST + 8),
                "s_lshl_b32 s%d, s%d, 12" % (ST + 2, ST + 2),
                "s_lshl_b32 s%d, s%d, 11" % (ST + 1, ST + 1),
                "s_add_u32 s%d, s%d, s%d" % (ST + 2, ST + 2, ST + 1),
                "s_lshr_b32 s%d, s%d, 1" % (S_HS, S_NJ), "s_lshl_b32 s%d, s%d, 2" % (S_HS, S_HS),
                "s_and_b32 s%d, s%d, 1" % (ST + 1, S_NJ), "s_add_u32 s%d, s%d, s%d" % (S_HS, S_HS, ST + 1),
                "s_add_u32 s%d, s%d, 112" % (S_HS, S_HS), "s_add_u32 s%d, s%d, s%d" % (S_HS, S_HS, ST + 8),
                "s_lshl_b32 s%d, s%d, 12" % (S_HS, S_HS),
                "v_lshlrev_b32 v%d, 4, v%d" % (VL16B, VLANE),
                "v_mov_b32 v%d, 1" % VONE]
    ecnt = [0]
    def glu_tile(p, mt, dst):
        l = []
        f, g = gacc(p, mt)
        u = ACCU + (p * 4 + mt) * 4
        e = TMP + 24 + 4 * (ecnt[0] % 2); ecnt[0] += 1
        if f == "a":
            g2 = ACCG + 16 + mt * 4
            for r in range(4):
                l.append("v_accvgpr_read_b32 v%d, a%d" % (g2 + r, g + r))
            g = g2
        for r in range(4):
            l.append("v_accvgpr_read_b32 v%d, a%d" % (e + r, u + r))
        for r in range(4):
            l.append("v_max_f32 v%d, 0, v%d" % (g + r, g + r))
        for r in range(4):
            l.append("v_mul_f32 v%d, v%d, v%d" % (g + r, g + r, e + r))
        for h in range(2):
            l.append("v_cvt_pk_bf16_f32 v%d, v%d, v%d" % (dst + h, g + 2 * h, g + 2 * h + 1))
        return l
    def glu_pair(pp, defer=False):
        l = []; st = []
        for mt in range(4):
            d = ACCG + (2 * pp * 4 + mt) * 4 if pp < 2 else ACCG + 48 + mt * 4
            l += glu_tile(2 * pp, mt, d)
            l += glu_tile(2 * pp + 1, mt, d + 2)
            x = ("k", ("h", pp), "buffer_store_dwordx4 v[%d:%d], v%d, s[%d:%d], s%d offen offset:%d sc1" % (
                d, d + 3, VL16B, sH, sH + 3, [ST + 3, ST + 4, ST + 6][pp], mt * 1024))
            (st if defer else l).append(x)
        return (l, st) if defer else l
    VL8B = 191
    def glu_single():
        l = ["v_lshlrev_b32 v%d, 3, v%d" % (VL8B, VLANE)]; st = []
        for mt in range(4):
            d = 180 + 2 * mt
            l += glu_tile(6, mt, d)
            st.append(("k", ("h", 3), "buffer_store_dwordx2 v[%d:%d], v%d, s[%d:%d], s%d offen offset:%d sc1" % (
                d, d + 1, VL8B, sH, sH + 3, ST + 2, mt * 512)))
        return l, st

    NU = 36
    STD = [(s, j) for s in range(2) for j in range(18)]
    LAST = [(0, j) for j in (4, 5, 6, 7)] + [(1, j) for j in (4, 5, 6, 7)]
    for p in range(2, 7):
        LAST += [(0, 4 + 2 * p), (0, 5 + 2 * p), (1, 4 + 2 * p), (1, 5 + 2 * p)]
    LAST += [(0, j) for j in range(4)] + [(1, j) for j in range(4)]

    def unit_info(par, pos, sj, zero=False):
        s, j = sj
        pb = BPOOL + ((par * NU + pos) % NB) * 4
        if j < 4:
            cg, isim = j >> 1, j & 1
            reads = ["ds_read_b128 %s, v%d offset:%d" % (ar(pb, 4), VP + s * 2 + par, isim * 4096 + cg * 2048)]
            acc = lambda mt: vr(ACCS + (j * 4 + mt) * 4, 4)
            mf = ["v_mfma_f32_16x16x32_bf16 %s, %s, %s, %s" % (acc(mt), ar(ABUF + (s * 4 + mt) * 4, 4), ar(pb, 4),
                                                               "0" if zero else acc(mt)) for mt in range(4)]
        else:
            p, isup = (j - 4) >> 1, (j - 4) & 1
            reads = ["ds_read_b64_tr_b16 %s, v%d offset:%d" % (ar(pb + 2 * h, 2), VW + par, L_G + isup * 14336 + (32 * s + 8 * h) * 224 + p * 32)
                     for h in range(2)]
            if isup:
                acc = lambda mt: ar(ACCU + (p * 4 + mt) * 4, 4)
            else:
                acc = lambda mt: vr(gacc(p, mt)[1], 4, gacc(p, mt)[0])
            mf = ["v_mfma_f32_16x16x32_bf16 %s, %s, %s, %s" % (acc(mt), ar(pb, 4), ar(ABUF + (s * 4 + mt) * 4, 4),
                                                               "0" if zero else acc(mt)) for mt in range(4)]
        return reads, mf
    def a_reads(par, s):
        return ["ds_read_b128 %s, v%d offset:%d" % (ar(ABUF + (s * 4 + mt) * 4, 4), VX + s * 2 + par, mt * 2048) for mt in range(4)]

    bodyid = [0]
    def body(par, first=False, last=False, stream=None, sstart=0, cap=None, pre=None, npf=1):
        bodyid[0] += 1
        bid = bodyid[0]
        order = LAST if last else STD
        nslots = NU * 4 + (TU * 4 if last else 0)
        fill = [[] for _ in range(nslots + 1)]
        if pre:
            fill[0].append(pre)
        seq = [("k", (bid, "A", 0, mt), r) for mt, r in enumerate(a_reads(par, 0))]
        for u in range(LA):
            reads, _ = unit_info(par, u, order[u])
            seq += [("k", (bid, "B", u), r) for r in reads]
        assert len(seq) <= TU * 4
        for k, it in enumerate(seq):
            fill[k].append(it)
        base = TU * 4
        for u in range(LA, NU):
            reads, _ = unit_info(par, u, order[u])
            for k, r in enumerate(reads):
                fill[base + 4 * (u - LA) + 2 * k].append(("k", (bid, "B", u), r))
        for mt, r in enumerate(a_reads(par, 1)):
            fill[base + (1 + 2 * mt if last else 4 * (2 + 2 * mt) + 1)].append(("k", (bid, "A", 1, mt), r))
        if not last:
            pos = opt.get("k1_dma0", 1)
            step = opt.get("k1_dmastep", 4)
            for kind, t in dma_list(par ^ 1, npf):
                if kind == "dma":
                    fill[pos].append(("k", (bid, "dma"), t)); pos += step
                elif kind == "pf":
                    fill[pos].append(t); pos += step
                elif kind == "m0":
                    fill[pos].append([t, "s_nop 0"] if (first and pos < base) else t); pos += 1
                else:
                    fill[pos].append(t)
        left = []
        if stream:
            left = place_stream(fill, stream, sstart, cap or CAP, nslots)
            assert last or not left, len(left)
        mfl = []
        if not first:
            for u in range(NU - TU, NU):
                _, mf = unit_info(par ^ 1, u, STD[u])
                mfl += [(m, None) for m in mf]
        else:
            mfl += [(None, None)] * (TU * 4)
        for u in range(NU if last else NU - TU):
            s, j = order[u]
            _, mf = unit_info(par, u, order[u], zero=(first and s == 0))
            mfl += [(m, [(bid, "B", u), (bid, "A", s, mt)]) for mt, m in enumerate(mf)]
        for k, (m, deps) in enumerate(mfl):
            for it in fill[k]:
                a.item(it)
            if m is not None:
                if deps:
                    a.lneed(deps)
                a(m)
        assert not fill[len(mfl)]
        if not last:
            a.sync([(bid, "dma")])
        return left

    body(0, first=True, stream=small_loads(), sstart=opt.get("k1_sl0", 92), cap=3, npf=opt.get("k1_npf0", 1))
    stamp()
    body(1, stream=g_stream(), sstart=opt.get("k1_gstart", 24), cap=3, npf=opt.get("k1_npf1", 2))
    stamp()
    a("s_mov_b32 s%d, 6" % S_CNT)
    a.raw(".p2align 6")
    a.raw("k1_loop:")
    arrive = ["s_lshl_b32 s%d, s%d, 3" % (ST, S_W), "s_or_b32 s%d, s%d, s%d" % (ST, ST, S_CNT),
              "s_cmp_lg_u32 s%d, 5" % ST, "s_cbranch_scc1 k1_noarr",
              "v_mov_b32 v%d, 1" % TMP, "s_mov_b64 exec, 1",
              ("cond", "buffer_atomic_add v%d, off, s[%d:%d], 0 sc1" % (TMP, sD, sD + 3)),
              "s_mov_b64 exec, -1", "k1_noarr:"]
    body(0, pre=arrive)
    body(1)
    a("s_sub_u32 s%d, s%d, 1" % (S_CNT, S_CNT))
    a("s_cmp_lg_u32 s%d, 0" % S_CNT)
    a("s_cbranch_scc1 k1_loop")
    stamp()
    body(0, stream=param_stream() + [("at", 84)] + late_loads() + (touch_stream() if opt.get("touch", 0) else []), sstart=0, cap=opt.get("cap14", 3))
    stamp(9)

    sWD, sCR, sCI, sO, sDS = sW, sB, sP, sPF, 72
    S_MI2, S_NI, S_OA, S_OB4, S_OB7, S_M2, S_OT, S_OT2, S_FH = 31, 32, 33, 34, 35, 3, 76, 77, 78
    VDG = [192, 193, 195, 197]
    VA = [VL16B, 199]
    VFP = 201
    ACC2 = 0
    P2POOL = 128
    VWR = 160; VCR = 168; VDC = 170; VF2 = 174; VPA = 175
    VG = 250; VDS = 186; VXD = 204; VOUT = 180; VE = 228
    ACC1 = 0
    ARING = [160, 192, 224, 128]
    NST = 22
    OV = [0, 4, 7, 11, 14, 18, 21, 25]
    def lblk(t, b):
        if t < 12:
            return OV[2 * (t % 4) + b] + t // 4
        return [3, 10, 17, 24][2 * (t - 12) + b]
    def p2_setup_early():
        x0, x1 = TMP + 28, TMP + 29
        l = srd_l(sWD, P_WD, 3584 * 1024 * 2)
        l += ["s_lshr_b32 s%d, s%d, 3" % (S_MI2, S_TILE), "s_and_b32 s%d, s%d, 7" % (S_NI, S_TILE),
              "s_lshl_b32 s%d, s%d, 12" % (S_M2, S_W),
              "s_mul_i32 s%d, s%d, 0x%x" % (S_OB4, S_S2, 28 * 65536),
              "s_lshr_b32 s%d, s%d, 1" % (S_OT, S_W),
              "s_mul_i32 s%d, s%d, 0x%x" % (S_OT2, S_OT, 7 * 65536),
              "s_add_u32 s%d, s%d, s%d" % (S_OB7, S_OB4, S_OT2),
              "s_lshl_b32 s%d, s%d, 18" % (S_OT2, S_OT),
              "s_add_u32 s%d, s%d, s%d" % (S_OB4, S_OB4, S_OT2),
              "s_lshl_b32 s%d, s%d, 2" % (S_OT, S_MI2), "s_add_u32 s%d, s%d, s%d" % (S_OT, S_OT, S_W),
              "s_mul_i32 s%d, s%d, 640" % (S_FH, S_OT),
              "s_mul_i32 s%d, s%d, 176" % (S_OT, S_OT),
              "s_mul_i32 s%d, s%d, 28" % (S_OT2, S_S2),
              "s_add_u32 s%d, s%d, s%d" % (S_OA, S_OT, S_OT2), "s_lshl_b32 s%d, s%d, 12" % (S_OA, S_OA),
              "s_lshl_b32 s%d, s%d, 5" % (S_OT2, S_S2), "s_add_u32 s%d, s%d, s%d" % (S_FH, S_FH, S_OT2),
              "s_add_u32 s%d, s%d, 0x%x" % (S_FH, S_FH, WS_FH),
              "v_and_b32 v%d, 7, v%d" % (VFP, VLANE), "v_lshlrev_b32 v%d, 2, v%d" % (VFP, VFP),
              "v_lshlrev_b32 v%d, 4, v%d" % (VA[1], VLANE), "v_add_u32 v%d, 0x1000, v%d" % (VA[1], VA[1]),
              "s_lshl_b32 s%d, s%d, 1" % (S_OT, S_S2),
              "s_and_b32 s%d, s%d, 1" % (S_OT2, S_W), "s_lshl_b32 s%d, s%d, 15" % (S_OT2, S_OT2),
              "s_lshl_b32 s%d, s%d, 8" % (79, S_NI), "s_add_u32 s%d, s%d, s%d" % (S_OT2, S_OT2, 79)]
        for i in range(4):
            l += ["v_lshrrev_b32 v%d, 1, v%d" % (x0, VC), "v_xor_b32 v%d, v%d, v%d" % (x0, x0, VQ)]
            if i & 1:
                l.append("v_xor_b32 v%d, 4, v%d" % (x0, x0))
            l += ["v_add_u32 v%d, s%d, v%d" % (x0, S_OT, x0), "v_and_b32 v%d, 7, v%d" % (x0, x0),
                  "v_and_b32 v%d, 1, v%d" % (x1, VC), "v_lshl_add_u32 v%d, v%d, 1, v%d" % (x0, x0, x1),
                  "v_lshlrev_b32 v%d, 11, v%d" % (x1, VQ), "v_lshl_add_u32 v%d, v%d, 4, v%d" % (x0, x0, x1),
                  "v_add_u32 v%d, s%d, v%d" % (x0, S_OT2, x0),
                  "v_add_u32 v%d, 0x%x, v%d" % (VDG[i], i * (4 * 2048 - 1024), x0)]
        return l
    def p2_setup_late():
        y0, y1, y2, y3 = T2 + 28, T2 + 29, T2 + 30, T2 + 31
        l = srd_l(sCR, P_CRE, 1024 * 1024 * 2) + srd_l(sCI, P_CIM, 1024 * 1024 * 2) + srd_l(sO, P_OUT, 2048 * 1024 * 4) + \
            srd_l(sDS, P_DSK, 2048)
        l += ["v_lshrrev_b32 v%d, 1, v%d" % (y0, VC), "v_xor_b32 v%d, v%d, v%d" % (y0, y0, VQ),
              "v_lshlrev_b32 v%d, 7, v%d" % (y1, VC), "v_lshl_add_u32 v%d, v%d, 4, v%d" % (VCR, y0, y1),
              "v_xor_b32 v%d, 64, v%d" % (VCR + 1, VCR),
              "s_add_u32 s%d, s%d, s%d" % (ST, S_W, S_S2), "s_and_b32 s%d, s%d, 3" % (ST, ST),
              "s_lshl_b32 s%d, s%d, 5" % (ST, ST), "s_lshl_b32 s%d, s%d, 7" % (ST + 1, S_NI),
              "s_add_u32 s%d, s%d, s%d" % (ST, ST, ST + 1),
              "v_lshrrev_b32 v%d, 3, v%d" % (y0, VLANE), "v_add_u32 v%d, s%d, v%d" % (y0, ST, y0),
              "v_lshlrev_b32 v%d, 11, v%d" % (y0, y0), "v_and_b32 v%d, 7, v%d" % (y1, VLANE),
              "v_xor_b32 v%d, v%d, v%d" % (y1, y1, VQ), "v_xor_b32 v%d, 4, v%d" % (y2, y1),
              "v_lshl_add_u32 v%d, v%d, 4, v%d" % (y1, y1, y0), "v_lshl_add_u32 v%d, v%d, 4, v%d" % (y2, y2, y0)]
        for i in range(4):
            l.append("v_add_u32 v%d, 0x%x, v%d" % (VDC + i, i * (8 * 2048 - 1024), y2 if i & 1 else y1))
        return l
    def p2_dma(t):
        slot = t % 4
        if t < 14:
            l = [["s_add_u32 m0, s%d, 0x%x" % (S_M2, slot * 16384),
                  "s_add_u32 s%d, s%d, 0x%x" % (S_OT, S_OB4 if t < 12 else S_OB7, lblk(t, 0) * 65536)]]
            for i in range(4):
                l.append(("k", ("g", t), "buffer_load_dwordx4 v%d, s[%d:%d], s%d offen offset:%d lds" % (VDG[i], sWD, sWD + 3, S_OT, i * 1024)))
        else:
            sc = sCI if (t - 14) & 1 else sCR
            l = [["s_add_u32 m0, s%d, 0x%x" % (S_M2, slot * 16384),
                  "s_lshl_b32 s%d, s%d, 9" % (S_OT, S_S2), "s_add_u32 s%d, s%d, %d" % (S_OT, S_OT, 128 * ((t - 14) >> 1))]]
            for i in range(4):
                l.append(("k", ("g", t), "buffer_load_dwordx4 v%d, s[%d:%d], s%d offen offset:%d lds" % (VDC + i, sc, sc + 3, S_OT, i * 1024)))
        return l
    def p2_aload(t):
        l = []
        for b in range(2):
            if t < 14:
                l.append("s_add_u32 s%d, s%d, 0x%x" % (S_OT2, S_OA, lblk(t, b) * 4096))
            else:
                l.append(["s_mul_i32 s%d, s%d, 0x%x" % (S_OT2, S_S2, (-12 * 4096) & 0xffffffff),
                          "s_add_u32 s%d, s%d, s%d" % (S_OT2, S_OT2, S_OA),
                          "s_add_u32 s%d, s%d, 0x%x" % (S_OT2, S_OT2, (112 + 2 * (t - 14) + b) * 4096)])
            for mt in range(4):
                r = ARING[t % 4] + (b * 4 + mt) * 4
                if t in (12, 13):
                    for hf in range(2):
                        l.append(("k", ("g", t), "buffer_load_dwordx2 %s, v%d, s[%d:%d], s%d offen offset:%d sc1" % (
                            ar(r + 2 * hf, 2), VL8B, sH, sH + 3, S_OT2, hf * 2048 + mt * 512)))
                else:
                    l.append(("k", ("g", t), "buffer_load_dwordx4 %s, v%d, s[%d:%d], s%d offen offset:%d sc1" % (
                        ar(r, 4), VA[0], sH, sH + 3, S_OT2, mt * 1024)))
        return l
    def poll_issue(key, vdst, voff, soff, imm=0, srd=sH):
        return ("k", key, "buffer_load_dword v%d, v%d, s[%d:%d], s%d offen offset:%d sc1" % (vdst, voff, srd, srd + 3, soff, imm))
    def poll_check(key, vdst, voff, soff, imm, val, masks=None, srd=sH):
        lab = a.newlab("chk")
        cmp = ["v_cmp_eq_u32 vcc, %s, v%d" % (val, vdst)]
        if masks is None:
            cmp += ["s_cmp_eq_u64 vcc, -1"]
        else:
            cmp += ["s_and_b32 s%d, vcc_lo, s%d" % (ST + 9, masks), "s_cmp_eq_u32 s%d, s%d" % (ST + 9, masks)]
        a.tail += [lab + "_slow:", "    s_mov_b32 s79, 0x20000", lab + "_loop:", "    s_sleep 1",
                   "    buffer_load_dword v%d, v%d, s[%d:%d], s%d offen offset:%d sc1" % (vdst, voff, srd, srd + 3, soff, imm),
                   "    s_waitcnt vmcnt(0)"] + ["    " + x for x in cmp] + \
                  ["    s_cbranch_scc1 %s_ok" % lab, "    s_sub_u32 s79, s79, 1", "    s_cmp_lg_u32 s79, 0",
                   "    s_cbranch_scc1 %s_loop" % lab, "    s_branch %s_ok" % lab]
        return [("vneed", [key])] + cmp + ["s_cbranch_scc0 %s_slow" % lab, lab + "_ok:"]

    base = TU * 4
    VPH = TMP + 9
    S_EARLY = 79 + 0
    S_EARLY = ST + 8
    es = glu_setup() + p2_setup_early()
    es += ["s_movk_i32 s%d, 256" % (ST + 5), poll_check("pc", VCH, VCZ, ST + 4, 0, "s%d" % (ST + 5), srd=sD)]
    g2l, g2s = glu_pair(2, defer=True)
    g3l, g3s = glu_single()
    es += ["s_add_u32 s%d, s%d, 4096" % (ST + 4, ST + 3), "s_add_u32 s%d, s%d, 8192" % (ST + 6, ST + 3)]
    es += [("at", base + 32 + 8)] + glu_pair(0) + [("at", base + 64 + 8)] + glu_pair(1) + [("at", base + 96 + 8)] + g2l + \
          [set_flag(0, [("h", 0)]), poll_issue("ph0", VPH, VFP, S_FH), ("at", base + 112 + 8)] + g3l
    left = body(1, last=True, stream=es, sstart=0, cap=opt.get("k1_capl", 5))
    print("last body leftover:", len(left))
    stamp(15)
    a("s_nop 7")
    for it in left:
        a.item(it)
    stamp(2)
    for t in range(3):
        a.item(p2_dma(t))
    a("s_and_b32 s%d, s%d, 7" % (ST, S_NJ))
    a("s_lshl_b32 s%d, 0x01010101, s%d" % (ST, ST))
    a.vneed(["ph0"])
    a("v_cmp_eq_u32 vcc, 1, v%d" % VPH)
    a("s_or_b32 s%d, vcc_lo, s%d" % (ST, ST))
    a("s_cmp_eq_u32 s%d, -1" % ST)
    a("s_cselect_b32 s%d, 1, 0" % S_EARLY)
    a("s_cbranch_scc0 k_noearly")
    a.cond = True
    for t in range(3):
        for it in p2_aload(t):
            a.item(it[2] if isinstance(it, tuple) else it)
    a.cond = False
    a.raw("k_noearly:")
    stamp(2)
    a.item(ssm_agg())
    a.sync()
    stamp(2)
    a.item(set_flag(1, [("h", 1)]))
    a.item(ssm_horner())
    x0, x1, x2 = TMP + 10, TMP + 11, TMP + 12
    a("v_lshrrev_b32 v%d, 2, v%d" % (x0, VLANE))
    a("v_and_b32 v%d, 7, v%d" % (x1, x0))
    a("v_lshlrev_b32 v%d, 8, v%d" % (x0, x0))
    a("v_and_b32 v%d, 3, v%d" % (x2, VLANE))
    a("v_lshl_add_u32 v%d, v%d, 3, v%d" % (x0, x2, x0))
    for j in range(8):
        a("v_xor_b32 v%d, %d, v%d" % (x2, j, x1))
        a("v_lshl_add_u32 v%d, v%d, 5, v%d" % (VWR + j, x2, x0))
    stamp(3)
    a("s_cmp_eq_u32 s%d, 1" % S_EARLY)
    a("s_cbranch_scc1 k_late_done")
    chk = poll_check("ph0", VPH, VFP, S_FH, 0, "1")
    a.item(chk)
    a.group = "A0"
    for t in range(3):
        a.item(p2_aload(t))
    a.group = None
    a.raw("k_late_done:")
    stamp(3)
    a.item(g2s)
    a.item(g3s)
    a.sync([("g", 0)])
    stamp(7)

    LA2 = opt.get("k2_la", 5); TU2 = opt.get("k2_tu", 3); NU2 = 16
    NM = opt.get("k2_nm", 2)
    def p2_ep_loads():
        y0, y1, y2, y3 = VE, VE + 1, VE + 2, VE + 3
        l = ["s_lshl_b32 s%d, s%d, 8" % (ST, S_MI2), "s_lshl_b32 s%d, s%d, 6" % (ST + 1, S_W),
              "s_add_u32 s%d, s%d, s%d" % (ST, ST, ST + 1),
              "v_lshrrev_b32 v%d, 2, v%d" % (y0, VC), "v_lshlrev_b32 v%d, 4, v%d" % (y0, y0),
              "v_bfe_u32 v%d, v%d, 1, 1" % (y1, VC), "v_add3_u32 v%d, v%d, v%d, s%d" % (y0, y0, y1, ST),
              "v_and_b32 v%d, 1, v%d" % (y1, VC), "v_lshl_add_u32 v%d, v%d, 3, v%d" % (y0, y1, y0),
              "s_lshl_b32 s%d, s%d, 7" % (ST, S_NI), "s_lshl_b32 s%d, s%d, 5" % (ST + 1, S_S2),
              "s_add_u32 s%d, s%d, s%d" % (ST, ST, ST + 1),
              "v_lshl_add_u32 v%d, v%d, 2, s%d" % (y1, VQ, ST),
              "v_lshlrev_b32 v%d, 2, v%d" % (y2, y0), "s_mov_b32 s%d, 0x%x" % (ST, WS_G)]
        for mt in range(4):
            l.append([("k", "ep", "buffer_load_dword v%d, v%d, s[%d:%d], s%d offen offset:%d sc1" % (VG + mt, y2, sH, sH + 3, ST, mt * 8))])
        l.append("v_lshlrev_b32 v%d, 1, v%d" % (y2, y1))
        for j in range(2):
            l.append([("k", "ep", "buffer_load_dwordx2 v[%d:%d], v%d, s[%d:%d], 0 offen offset:%d" % (VDS + 2 * j, VDS + 2 * j + 1, y2, sDS, sDS + 3, j * 32))])
        l.append("v_lshl_add_u32 v%d, v%d, 11, v%d" % (y2, y0, y2))
        for mt in range(4):
            l.append("v_add_u32 v%d, 0x%x, v%d" % (y3, mt * 2 * 2048, y2))
            for j in range(2):
                b = VXD + (j * 4 + mt) * 2
                l.append([("k", "ep", "buffer_load_dwordx2 v[%d:%d], v%d, s[%d:%d], 0 offen offset:%d" % (b, b + 1, y3, sX, sX + 3, j * 32))])
            l.append("v_lshlrev_b32 v%d, 1, v%d" % (VOUT + mt, y3))
        return l

    def unit2(gpos, t, s, j):
        slot = t % 4
        pb = P2POOL + (gpos % NB) * 4
        if t < 14:
            reads = ["ds_read_b64_tr_b16 %s, v%d offset:%d" % (vr(pb + 2 * h, 2), VWR + j, slot * 16384 + s * 8192 + h * 4096) for h in range(2)]
            acc = lambda mt: ar(ACC1 + (j * 4 + mt) * 4, 4)
            zero = (t == 0 and s == 0)
        else:
            reads = ["ds_read_b128 %s, v%d offset:%d" % (vr(pb, 4), VCR + s, slot * 16384 + j * 2048)]
            acc = lambda mt: vr(ACC2 + (j * 4 + mt) * 4, 4)
            zero = (t == 14 and s == 0)
        mf = ["v_mfma_f32_16x16x32_bf16 %s, %s, %s, %s" % (acc(mt), vr(pb, 4), ar(ARING[slot] + (s * 4 + mt) * 4, 4),
                                                           "0" if zero else acc(mt)) for mt in range(4)]
        return reads, mf

    W1 = 232; W2 = 236
    def weights():
        l = [("vneed", ["ep"])]
        for mt in range(4):
            l += ["v_sub_f32 v%d, 1.0, v%d" % (W1 + mt, VG + mt),
                  "v_cvt_pk_bf16_f32 v%d, v%d, v%d" % (W1 + mt, W1 + mt, W1 + mt),
                  "v_lshlrev_b32 v%d, 16, v%d" % (W1 + mt, W1 + mt),
                  "v_add_f32 v%d, v%d, v%d" % (W2 + mt, VG + mt, VG + mt)]
        for jj in range(1, 4):
            l += ["s_add_u32 s%d, s%d, %d" % (ST, S_S2, jj), "s_and_b32 s%d, s%d, 3" % (ST, ST),
                  "s_lshl_b32 s%d, s%d, 2" % (ST + 1, S_TILE), "s_add_u32 s%d, s%d, s%d" % (ST, ST, ST + 1),
                  "s_mul_i32 s%d, s%d, 3" % (ST, ST), "s_add_u32 s%d, s%d, %d" % (ST, ST, jj - 1),
                  "s_lshl_b32 s%d, s%d, 2" % (ST, ST), "s_add_u32 s%d, s%d, s%d" % (ST, ST, S_W),
                  "s_lshl_b32 s%d, s%d, 12" % (ST, ST), "s_add_u32 s%d, s%d, 0x%x" % (ST + 2 + jj, ST, WS_EX)]
        l += ["s_lshl_b32 s%d, s%d, 2" % (ST, S_TILE), "s_add_u32 s%d, s%d, s%d" % (ST, ST, S_S2),
              "s_mul_i32 s%d, s%d, 12" % (ST, ST), "s_add_u32 s%d, s%d, s%d" % (ST, ST, S_W),
              "s_lshl_b32 s%d, s%d, 12" % (ST, ST), "s_add_u32 s%d, s%d, 0x%x" % (ST + 6, ST, WS_EX),
              "s_lshl_b32 s%d, s%d, 7" % (ST + 7, S_TILE), "s_lshl_b32 s%d, s%d, 4" % (ST, S_W),
              "s_add_u32 s%d, s%d, s%d" % (ST + 7, ST + 7, ST), "s_add_u32 s%d, s%d, 0x%x" % (ST + 7, ST + 7, WS_FX),
              "v_and_b32 v%d, 12, v%d" % (VFP, VFP)]
        return l
    ec2 = [0]
    def combine(j, mt):
        b = (j * 4 + mt) * 4
        e = 240 + 4 * (ec2[0] % 2); ec2[0] += 1
        l = ["v_accvgpr_read_b32 v%d, a%d" % (e + r, ACC1 + b + r) for r in range(4)]
        l += ["v_mul_f32 v%d, v%d, v%d" % (ACC2 + b + r, W2 + mt, ACC2 + b + r) for r in range(4)]
        l += ["v_fmac_f32 v%d, v%d, v%d" % (ACC2 + b + r, W1 + mt, e + r) for r in range(4)]
        return l
    def send(j):
        l = []
        for mp in range(2):
            d = ACC2 + (j * 4 + 2 * mp) * 4
            for mm in range(2):
                mt = 2 * mp + mm
                b = ACC2 + (j * 4 + mt) * 4
                l += combine(j, mt)
                l += ["v_cvt_pk_bf16_f32 v%d, v%d, v%d" % (d + 2 * mm, b, b + 1),
                      "v_cvt_pk_bf16_f32 v%d, v%d, v%d" % (d + 2 * mm + 1, b + 2, b + 3)]
            l.append(("k", "ex", "buffer_store_dwordx4 v[%d:%d], v%d, s[%d:%d], s%d offen offset:%d sc1" % (
                d, d + 3, VA[0], sH, sH + 3, ST + 2 + (j >> 1), ((j & 1) * 2 + mp) * 1024)))
        return l
    def own(j):
        l = []
        E = VE
        for mt in range(4):
            l += combine(j, mt)
            b = ACC2 + (j * 4 + mt) * 4
            xb = VXD + (j * 4 + mt) * 2
            db = VDS + 2 * j
            for h in range(2):
                l += ["v_lshlrev_b32 v%d, 16, v%d" % (E, xb + h), "v_and_b32 v%d, 0xffff0000, v%d" % (E + 1, xb + h),
                      "v_lshlrev_b32 v%d, 16, v%d" % (E + 2, db + h), "v_and_b32 v%d, 0xffff0000, v%d" % (E + 3, db + h),
                      "v_mul_f32 v%d, v%d, v%d" % (E, E, E + 2), "v_mul_f32 v%d, v%d, v%d" % (E + 1, E + 1, E + 3),
                      "v_cvt_pk_bf16_f32 v%d, v%d, v%d" % (E, E, E + 1),
                      "v_and_b32 v%d, 0xffff0000, v%d" % (E + 1, E), "v_lshlrev_b32 v%d, 16, v%d" % (E, E),
                      "v_fmac_f32 v%d, v%d, v%d" % (b + 2 * h, VG + mt, E), "v_fmac_f32 v%d, v%d, v%d" % (b + 2 * h + 1, VG + mt, E + 1)]
        return l

    gp = [0]
    prev_tail = [None]
    PART_AT = {4: 1, 8: 2, 12: 3, 14: 4}
    pend = {}
    age = {}
    def body2(stages, stream=None, sstart=0, cap=2, stores=None):
        t0_ = stages[0]
        last = stages[-1] == NST - 1
        if len(stages) == 1:
            units = [(t0_, s, j) for s in range(2) for j in range(8)]
        else:
            units = [(t, s, j) for j in (7, 6, 5, 4, 3, 2, 0, 1) for t in stages for s in range(2)]
        n = len(units)
        g0 = gp[0]
        info = [unit2(g0 + u, *units[u]) for u in range(n)]
        ntail = len(prev_tail[0]) if prev_tail[0] else TU2 * 4
        nrun = n if last else n - TU2
        nsl = ntail + nrun * 4
        fill = [[] for _ in range(nsl + 1)]
        k = 0
        for u in range(LA2):
            for r in info[u][0]:
                fill[k].append(("k", ("b2", g0 + u), r)); k += 1
        for u in range(LA2, n):
            for kk, r in enumerate(info[u][0]):
                fill[max(ntail + 4 * (u - LA2) + 2 * kk, k)].append(("k", ("b2", g0 + u), r))
        tn = t0_ + 3
        if len(stages) == 1 and tn < NST:
            pos = 1
            for it in p2_dma(tn):
                fill[pos].append(it if prev_tail[0] or not isinstance(it, list) else it + ["s_nop 0"])
                pos += 1 if isinstance(it, list) else 2
            pos = ntail + 1
            if tn in PART_AT:
                fill[pos].append(poll_check(("ph", tn), VF2, VFP, S_FH, PART_AT[tn] * 128, "1"))
            for it in p2_aload(tn):
                fill[pos].append(it)
                if isinstance(it, tuple):
                    pos += opt.get("k2_astep", 4) // (2 if tn in (12, 13) else 1)
            if tn + 1 in PART_AT:
                fill[0].append(poll_issue(("ph", tn + 1), VF2, VFP, S_FH, PART_AT[tn + 1] * 128))
        for lane, (key, cnt) in list(pend.items()):
            if len(a.vid.get(key, [])) == cnt:
                age[lane] = age.get(lane, 0) + 1
                if age[lane] >= opt.get("k2_flagage", 2):
                    fill[0].append(set_flag(lane, [key]))
                    print("flag", lane, "posted at phase-2 stage", t0_)
                    del pend[lane]
        for k_, it in enumerate(stores or []):
            fill[opt.get("k2_st0", 50) + k_ * opt.get("k2_stp", 6)].append(it)
        left = []
        if stream:
            left = place_stream(fill, stream, sstart, cap, nsl)
        mfl = [(m, None) for m in prev_tail[0]] if prev_tail[0] else [(None, None)] * ntail
        for u in range(nrun):
            mfl += [(m, [("b2", g0 + u)]) for m in info[u][1]]
        for k, (m, deps) in enumerate(mfl):
            for it in fill[k]:
                a.item(it)
            if m is not None:
                if deps:
                    a.lneed(deps)
                a(m)
        assert not fill[len(mfl)]
        prev_tail[0] = [m for u in range(nrun, n) for m in info[u][1]]
        gp[0] += n
        if not last:
            nxt = stages[-1] + 1
            need = [("g", nxt)] if nxt < NST - NM else [("g", tt) for tt in range(nxt, NST)]
            a.sync(need)
        return left

    epl = p2_ep_loads()
    epq = []; nl = 0
    for it in epl:
        epq.append(it)
        if isinstance(it, list):
            nl += 1
            if nl % 3 == 0:
                epq.append(("brk",))
    B = ("brk",)
    ssl, sss = ssm_store()
    xpf = ["s_lshl_b32 s%d, s%d, 19" % (ST, S_MI2), "s_lshl_b32 s%d, s%d, 17" % (ST + 1, S_W),
           "s_add_u32 s%d, s%d, s%d" % (ST, ST, ST + 1), "s_lshl_b32 s%d, s%d, 8" % (ST + 1, S_NI),
           "s_add_u32 s%d, s%d, s%d" % (ST, ST, ST + 1), "s_lshl_b32 s%d, s%d, 6" % (ST + 1, S_S2),
           "s_add_u32 s%d, s%d, s%d" % (ST, ST, ST + 1), "v_lshlrev_b32 v%d, 11, v%d" % (VA[1], VLANE),
           "buffer_load_dword v%d, v%d, s[%d:%d], s%d offen" % (VA[1], VA[1], sX, sX + 3, ST)]
    q = p2_setup_late() + [("at", 40), fa_flag(), B] + \
        [("at", 50), poll_issue("pa", VPA, VFP, ST + 7), B] + \
        [("at", opt.get("k2_pachk", 40)), poll_check("pa", VPA, VFP, ST + 7, 0, "1", masks=ST + 5)] + ssm_lb_loads() + xpf + [B, ("at", 30)] + \
        ssm_final() + ssl + [("mark4",), B] + epq + [B] + weights()
    pend.update({2: (("h", 2), 4), 3: (("h", 3), 4), 4: (("h", 4), 8)})
    stq = []
    for t in range(NST - NM):
        had4 = ("mark4",) in q
        q = body2([t], stream=q, sstart=2, cap=opt.get("k2_capq", 5), stores=stq.pop(0) if stq else None)
        if had4 and ("mark4",) not in q:
            n_ = opt.get("k2_ssn", 4)
            stq += [sss[i:i + n_] for i in range(0, 8, n_)]
            opt["k2_stp"] = 56 // n_
            opt["k2_st0"] = 7
        stamp(5 if t in (3, 13) else 4)
    assert not pend
    assert not q, len(q)
    stamp(1)
    upt = NM * 2 * 4
    es = []
    for n_, j in enumerate((7, 6, 5, 4, 3, 2)):
        es += [("at", TU2 * 4 + (n_ + 1) * upt + 8)] + send(j)
    left = body2(list(range(NST - NM, NST)), stream=es, sstart=0, cap=opt.get("k2_cap", 5))
    stamp()
    a("s_nop 7")
    for it in left:
        a.item(it)
    a.item(own(0))
    a.item(set_flag(5, ["ex"]))
    a.item(poll_issue("px", VF2, VFP, ST + 7))
    a.item(own(1))
    stamp()
    a.item(poll_check("px", VF2, VFP, ST + 7, 0, "1"))
    stamp()
    R = 32
    for sl in range(3):
        a("s_add_u32 s%d, s%d, 0x%x" % (ST, ST + 6, sl * 16384))
        for k in range(4):
            b = R + (sl * 4 + k) * 4
            a("buffer_load_dwordx4 v[%d:%d], v%d, s[%d:%d], s%d offen offset:%d sc1" % (b, b + 3, VA[0], sH, sH + 3, ST, k * 1024), key=("rx", k))
    E = VE
    for k in range(4):
        j, mp = k >> 1, k & 1
        a.vneed([("rx", k)])
        for mm in range(2):
            mt = 2 * mp + mm
            b = ACC2 + (j * 4 + mt) * 4
            for sl in range(3):
                rb = R + (sl * 4 + k) * 4 + 2 * mm
                for h in range(2):
                    a("v_lshlrev_b32 v%d, 16, v%d" % (E + 2 * h, rb + h))
                    a("v_and_b32 v%d, 0xffff0000, v%d" % (E + 2 * h + 1, rb + h))
                for r in range(4):
                    a("v_add_f32 v%d, v%d, v%d" % (b + r, b + r, E + r))
            a("buffer_store_dwordx4 v[%d:%d], v%d, s[%d:%d], 0 offen offset:%d" % (b, b + 3, VOUT + mt, sO, sO + 3, j * 64))
    if STAMPS:
        stamp(31)
        a("s_waitcnt vmcnt(0)")
        stamp(31)
        a("s_memrealtime s[94:95]")
        a("s_waitcnt lgkmcnt(0)")
        a("v_writelane_b32 v%d, s94, 2" % VST)
        a("s_getreg_b32 s88, hwreg(HW_REG_XCC_ID)")
        a("v_writelane_b32 v%d, s88, 31" % VST)
        a("s_lshl_b32 s88, s2, 2")
        a("s_add_u32 s88, s88, s%d" % S_W)
        a("s_lshl_b32 s88, s88, 7")
        a("s_add_u32 s88, s88, 0x%x" % WS_STAMP)
        a("v_lshlrev_b32 v%d, 2, v%d" % (VE, VLANE))
        a("s_mov_b32 exec_hi, 0")
        a("buffer_store_dword v%d, v%d, s[%d:%d], s88 offen" % (VST, VE, sH, sH + 3))
    a.raw("k_done:")
    a("s_endpgm")
    return a

def build(opt):
    hdr = open("cdna_kernels/%s.s.ref" % NAME).read().split("; Override launch")[0]
    out = hdr
    kn = NAME + "_kernel"
    if opt.get("list"):
        out += "; @launch kernel=%s grid=(256,1,1) block=(256,1,1) lds=%d\n" % (kn, LDS_BYTES)
    else:
        out += "; @launch grid=(256,1,1) block=(256,1,1) lds=%d\n" % LDS_BYTES
    out += '.amdgcn_target "amdgcn-amd-amdhsa--gfx950"\n.text\n'
    out += ".globl %s\n.p2align 8\n.type %s,@function\n" % (kn, kn) + gen(opt).text()
    out += '.section .rodata,"a"\n.p2align 6\n'
    out += """.amdhsa_kernel %s
  .amdhsa_next_free_vgpr 512
  .amdhsa_next_free_sgpr 102
  .amdhsa_accum_offset 256
  .amdhsa_group_segment_fixed_size 0
  .amdhsa_kernarg_size 136
  .amdhsa_user_sgpr_count 2
  .amdhsa_user_sgpr_kernarg_segment_ptr 1
  .amdhsa_system_sgpr_workgroup_id_x 1
.end_amdhsa_kernel
""" % kn
    return out

if __name__ == "__main__":
    opt = {}
    path = "cdna_kernels/%s.s" % NAME
    for x in sys.argv[1:]:
        if "=" in x:
            k, v = x.split("=", 1)
            try:
                v = int(v)
            except ValueError:
                pass
            opt[k] = v
        else:
            path = x
    open(path, "w").write(build(opt))
    print("wrote", path)
```
